```python
import torch

def _softmax(x, axis=-1):
    return torch.softmax(x, dim=axis)
def _gelu(x):
    return torch.nn.functional.gelu(x, approximate="tanh")
def _silu(x):
    return torch.nn.functional.silu(x)
def _sigmoid(x):
    return torch.sigmoid(x)
def _layernorm(x, axis=-1, eps=1e-5):
    m = x.mean(dim=axis, keepdim=True)
    v = x.var(dim=axis, keepdim=True, unbiased=False)
    return (x - m) / torch.sqrt(v + eps)
def _scatter_add(tgt, idx, src, axis=0):
    return tgt.clone().index_add_(axis, idx, src)
def _segment_sum(src, seg, n):
    out = torch.zeros((n,) + src.shape[1:], dtype=src.dtype)
    return out.index_add_(0, seg, src)
def _pad(x, pw):
    flat = tuple(v for pair in reversed(pw) for v in pair)
    return torch.nn.functional.pad(x, flat)

kernel_name = 'sequential_preLN__spectral_fnet__glu_gated_glu__prompt'

def setup_inputs():

    _w = (lambda a: (lambda t: t.to(torch.bfloat16) if t.is_floating_point() else t)(torch.as_tensor(a)))
    def _A_setup():
        B, S, D = 1, 2048, 512
        ns = torch.arange(S)[:, None] * torch.arange(S)[None, :]
        nd = torch.arange(D)[:, None] * torch.arange(D)[None, :]
        Ws_re = torch.cos(-2.0 * torch.pi * ns / S).to(float)
        Ws_im = torch.sin(-2.0 * torch.pi * ns / S).to(float)
        Wd_re = torch.cos(-2.0 * torch.pi * nd / D).to(float)
        Wd_im = torch.sin(-2.0 * torch.pi * nd / D).to(float)
        return {
            "x": _w((lambda *s: torch.randn(*s, dtype=torch.bfloat16) * 0.05)(B, S, D)),
            "dft_seq_re": _w(Ws_re),
            "dft_seq_im": _w(Ws_im),
            "dft_hid_re": _w(Wd_re),
            "dft_hid_im": _w(Wd_im),
        }
    _A_in = _A_setup()

    def _B_setup():
        B, S, D, F = 1, 2048, 512, 1792
        return {
            "x": _w((lambda *s: torch.randn(*s, dtype=torch.bfloat16) * 0.05)(B, S, D)),
            "w_gate": _w((lambda *s: torch.randn(*s, dtype=torch.bfloat16) * 1.6)(D, F)),
            "w_up": _w((lambda *s: torch.randn(*s, dtype=torch.bfloat16) * 0.8)(D, F)),
            "w_down": _w((lambda *s: torch.randn(*s, dtype=torch.bfloat16) * 0.8)(F, D)),
        }
    _B_in = _B_setup()

    return {
        "A_x": _A_in["x"],
        "A_dft_seq_re": _A_in["dft_seq_re"],
        "A_dft_seq_im": _A_in["dft_seq_im"],
        "A_dft_hid_re": _A_in["dft_hid_re"],
        "A_dft_hid_im": _A_in["dft_hid_im"],
        "B_x": _B_in["x"],
        "B_w_gate": _B_in["w_gate"],
        "B_w_up": _B_in["w_up"],
        "B_w_down": _B_in["w_down"],
    }

def reference(A_x, A_dft_seq_re, A_dft_seq_im, A_dft_hid_re, A_dft_hid_im, B_x, B_w_gate, B_w_up, B_w_down):
    def _A_ref(x, dft_seq_re, dft_seq_im, dft_hid_re, dft_hid_im):
        a = torch.einsum("bsd,ed->bse", x, dft_hid_re)
        b = torch.einsum("bsd,ed->bse", x, dft_hid_im)
        y = torch.einsum("ts,bse->bte", dft_seq_re, a) - torch.einsum("ts,bse->bte", dft_seq_im, b)
        return y

    def _B_ref(x, w_gate, w_up, w_down):
        g = torch.einsum("bsd,df->bsf", x, w_gate)
        u = torch.einsum("bsd,df->bsf", x, w_up)
        h = _sigmoid(g) * u
        return torch.einsum("bsf,fd->bsd", h, w_down)

    x = A_x
    h = x + _A_ref(_layernorm(x, axis=-1), A_dft_seq_re, A_dft_seq_im, A_dft_hid_re, A_dft_hid_im)
    h2 = h + _B_ref(_layernorm(h, axis=-1), B_w_gate, B_w_up, B_w_down)
    return h2
```

```python
import re

class Kern:
    def __init__(self, name, grid, block=256, lds=0, nvgpr=256, nagpr=0, nsgpr=102):
        self.name, self.grid, self.block, self.lds = name, grid, block, lds
        self.nvgpr, self.nagpr, self.nsgpr = nvgpr, nagpr, nsgpr
        self.L = []
        self.vm = []
        self.lg = []
        self.nlab = 0
    def e(self, s):
        for line in s.strip().split('\n'):
            line = line.strip()
            if line: self.L.append(line)
    def c(self, s): self.L.append('; ' + s)
    def label(self, l): self.L.append(f'{l}:')
    def newlabel(self, base='L'):
        self.nlab += 1
        return f'.{base}_{self.name}_{self.nlab}'
    def vmem(self, s, tag=None):
        self.e(s); self.vm.append(tag)
    def ds(self, s, tag=None):
        self.e(s); self.lg.append(tag)
    def _cnt(self, q, tags):
        if not isinstance(tags, (list, tuple, set)): tags = [tags]
        idx = -1
        for i, t in enumerate(q):
            if t in tags: idx = i
        return idx
    def wait(self, vm=None, lg=None, force=False):
        parts = []
        if vm is not None:
            if vm == 'all':
                if self.vm or force: parts.append('vmcnt(0)'); self.vm = []
            else:
                idx = self._cnt(self.vm, vm)
                if idx >= 0:
                    n = len(self.vm) - 1 - idx
                    assert n <= 63
                    parts.append(f'vmcnt({n})'); self.vm = self.vm[idx + 1:]
        if lg is not None:
            if lg == 'all':
                if self.lg or force: parts.append('lgkmcnt(0)'); self.lg = []
            else:
                idx = self._cnt(self.lg, lg)
                if idx >= 0:
                    n = len(self.lg) - 1 - idx
                    if n > 15: n = 15
                    assert len(self.lg) - 1 - idx <= 15, 'lgkm overflow'
                    parts.append(f'lgkmcnt({n})'); self.lg = self.lg[idx + 1:]
        if parts: self.e('s_waitcnt ' + ' '.join(parts))
    def nop(self, n):
        while n > 0:
            k = min(n, 16); self.e(f's_nop {k-1}'); n -= k
    def text(self):
        out = [f'.globl {self.name}', '.p2align 8', f'.type {self.name},@function', f'{self.name}:']
        for l in self.L:
            out.append(l if l.endswith(':') else '    ' + l)
        return '\n'.join(out)
    def desc(self):
        ao = (self.nvgpr + 3) // 4 * 4
        nf = ao + self.nagpr if self.nagpr else self.nvgpr
        return '\n'.join(['.p2align 6', f'.amdhsa_kernel {self.name}', f'  .amdhsa_next_free_vgpr {nf}', f'  .amdhsa_next_free_sgpr {self.nsgpr}',
                          f'  .amdhsa_accum_offset {ao}', '  .amdhsa_group_segment_fixed_size 0', '  .amdhsa_kernarg_size 96',
                          '  .amdhsa_user_sgpr_count 2', '  .amdhsa_user_sgpr_kernarg_segment_ptr 1', '  .amdhsa_system_sgpr_workgroup_id_x 1',
                          '.end_amdhsa_kernel'])

def assemble_file(kerns, header='', launches=None):
    L = []
    if header: L.append(header.rstrip())
    for k in (launches or kerns):
        L.append(f'; @launch kernel={k.name} grid=({k.grid},1,1) block=({k.block},1,1) lds={k.lds}')
    L.append('.amdgcn_target "amdgcn-amd-amdhsa--gfx950"')
    L.append('.text')
    for k in kerns: L.append(k.text())
    L.append('.section .rodata,"a"')
    for k in kerns: L.append(k.desc())
    return '\n'.join(L) + '\n'

_reg = re.compile(r'\b([vas])(\d+)\b|\b([vas])\[(\d+):(\d+)\]')
def regs_of(op):
    out = set()
    for m in _reg.finditer(op):
        if m.group(1): out.add((m.group(1), int(m.group(2))))
        else:
            for i in range(int(m.group(4)), int(m.group(5)) + 1): out.add((m.group(3), i))
    if re.search(r'\bvcc\b', op): out.add(('s', 'vcc'))
    if re.search(r'\bm0\b', op): out.add(('s', 'm0'))
    if re.search(r'\bexec\b', op): out.add(('s', 'exec'))
    return out

TRANS = ('v_exp_', 'v_log_', 'v_rcp_', 'v_rsq_', 'v_sqrt_', 'v_sin_', 'v_cos_')
def parse(line):
    line = line.split(';')[0].strip()
    if not line or line.endswith(':') or line.startswith('.'): return None
    parts = line.split(None, 1)
    mn = parts[0]; rest = parts[1] if len(parts) > 1 else ''
    ops = [o.strip() for o in re.split(r',(?![^\[]*\])', rest)] if rest else []
    d = dict(mn=mn, line=line, w=set(), r=set(), cls='other', ops=ops)
    if mn.startswith('v_mfma'):
        d['cls'] = 'mfma'; d['w'] = regs_of(ops[0]); d['ra'] = regs_of(ops[1]) | regs_of(ops[2]); d['rc'] = regs_of(ops[3]); d['r'] = d['ra'] | d['rc']
        d['passes'] = 8 if '32x32x16' in mn else (4 if '16x16x32' in mn else 16)
    elif mn.startswith('v_'):
        d['cls'] = 'valu'
        if mn.startswith('v_cmp'):
            d['w'] = regs_of(ops[0]); d['r'] = set().union(*[regs_of(o) for o in ops[1:]])
        elif mn.startswith('v_permlane'):
            d['w'] = regs_of(ops[0]) | regs_of(ops[1]); d['r'] = set(d['w']); d['perm'] = True
        else:
            d['w'] = regs_of(ops[0]); d['r'] = set().union(*[regs_of(o) for o in ops[1:]]) if len(ops) > 1 else set()
            if '_co_' in mn: d['w'] |= regs_of(ops[1])
            if mn.startswith(('v_fmac', 'v_dot2c', 'v_pk_fmac')): d['r'] |= d['w']
            if mn.startswith('v_cndmask') and len(ops) == 3: d['r'].add(('s', 'vcc'))
        d['trans'] = mn.startswith(TRANS)
        d['dpp'] = '_dpp' in mn or 'quad_perm' in line or 'row_' in line
        d['dot'] = mn.startswith('v_dot')
        d['rfl'] = mn.startswith(('v_readfirstlane', 'v_readlane'))
    elif mn.startswith(('global_', 'buffer_', 'flat_')):
        d['cls'] = 'vmem'
        if '_lds_' in mn or line.rstrip().endswith(' lds'):
            d['r'] = set().union(*[regs_of(o) for o in ops]); d['r'].add(('s', 'm0')); d['dma'] = True
        elif 'load' in mn:
            d['w'] = regs_of(ops[0]); d['r'] = set().union(*[regs_of(o) for o in ops[1:]])
        else:
            d['r'] = set().union(*[regs_of(o) for o in ops])
            if 'x3' in mn or 'x4' in mn:
                d['widestore'] = regs_of(ops[1]) if mn.startswith('global') else regs_of(ops[0])
    elif mn.startswith('ds_'):
        d['cls'] = 'ds'
        if 'read' in mn or 'permute' in mn or 'swizzle' in mn:
            d['w'] = regs_of(ops[0]); d['r'] = set().union(*[regs_of(o) for o in ops[1:]])
        else:
            d['r'] = set().union(*[regs_of(o) for o in ops])
    elif mn.startswith('s_'):
        d['cls'] = 'salu'
        if mn in ('s_nop',): d['nop'] = int(ops[0], 0) + 1
        elif mn.startswith(('s_waitcnt', 's_barrier', 's_endpgm', 's_branch', 's_cbranch', 's_setprio', 's_sleep')): pass
        elif mn.startswith('s_cmp'): d['r'] = set().union(*[regs_of(o) for o in ops])
        else:
            d['w'] = regs_of(ops[0]); d['r'] = set().union(*[regs_of(o) for o in ops[1:]]) if len(ops) > 1 else set()
            if 'saveexec' in mn: d['w'].add(('s', 'exec'))
    return d

def lint(kern):
    ins = [p for p in (parse(l) for l in kern.L) if p]
    probs = []
    for i, c in enumerate(ins):
        dist = 0
        for jx in range(i - 1, max(-1, i - 25), -1):
            p = ins[jx]
            need = 0; why = ''
            def chk(n, w):
                nonlocal need, why
                if n > need: need, why = n, w
            vw = {r for r in p['w'] if r[0] in 'va'}; sw = {r for r in p['w'] if r[0] == 's'}
            if p['cls'] == 'valu':
                if c['cls'] == 'mfma' and vw & c['r']: chk(2, 'valu->mfma')
                if c['cls'] == 'valu':
                    if c.get('dpp') and vw & c['r']: chk(2, 'valu->dpp')
                    if c.get('perm') and vw & c['r']: chk(2, 'valu->permlane')
                    if c.get('rfl') and vw & c['r']: chk(1, 'valu->readlane')
                    if p.get('trans') and not c.get('trans') and vw & c['r']: chk(1, 'trans->valu')
                    if p.get('dot') and (vw & (c['r'] | c['w'])) and not (c['mn'] == p['mn'] and not (vw & (regs_of(c['ops'][1]) | regs_of(c['ops'][2])))): chk(3, 'dot->other')
                    if sw & c['r']: chk(2, 'valu sgpr->valu')
                if p.get('trans') and c['cls'] in ('mfma', 'vmem', 'ds') and vw & c['r']: chk(2 if c['cls']=='mfma' else 1, 'trans->x')
                if p.get('dot') and c['cls'] in ('mfma', 'vmem', 'ds') and vw & c['r']: chk(3, 'dot->other')
                if c['cls'] == 'vmem' and sw & c['r']: chk(5, 'valu sgpr->vmem')
                if c['cls'] == 'salu' and sw & c['r']: chk(1, 'valu sgpr->salu(pad)')
            if p['cls'] == 'mfma':
                ps = p['passes']
                tbl_ab = {2: 5, 4: 8, 8: 12, 16: 20}[ps]
                if c['cls'] == 'mfma':
                    if vw & c['ra']: chk(tbl_ab, 'mfma->mfma AB')
                    if vw & c['rc']:
                        if not (c['rc'] == vw and c['passes'] == ps): chk({2: 4, 4: 6, 8: 10, 16: 18}[ps], 'mfma->mfma C overlap')
                    elif vw & c['w']: chk(tbl_ab, 'mfma WAW mfma')
                elif c['cls'] in ('valu', 'vmem', 'ds'):
                    if vw & (c['r'] | c['w']): chk(tbl_ab, 'mfma->valu/mem')
                if c['cls'] == 'valu' and (p['rc'] & c['w']): chk({2: 1, 4: 3, 8: 7, 16: 15}[ps], 'mfma srcC WAR')
            if p['cls'] == 'salu' and ('s', 'm0') in p['w'] and c.get('dma'): chk(1, 'm0->dma')
            if p.get('widestore') and (p['widestore'] & c['w']) and c['cls'] in ('valu', 'mfma', 'vmem', 'ds'): chk(2, 'widestore WAR')
            if need > dist:
                probs.append(f"{kern.name}: need {need} have {dist} [{why}]\n    P: {p['line']}\n    C: {c['line']}")
            dist += p.get('nop', 1)
            if dist >= 20: break
    return probs
```

```python
import sys
sys.path.insert(0, 'dev')
from asmlib import *
from gen import *

def gen_k3():
    NSLOT = 5; CH = 28672; TBL = NSLOT * CH
    k = Kern('k3_kernel', 256, lds=TBL + 896, nvgpr=256, nagpr=40)
    e = k.e
    END = '.L_k3_end'
    e('s_cmp_ge_u32 s2, 256'); e(f's_cbranch_scc1 {END}')
    e(f's_load_dwordx2 s[12:13], s[0:1], {KA["ws"]}')
    e('v_and_b32 v9, 63, v0')
    e('v_lshrrev_b32 v10, 6, v0')
    e('v_lshlrev_b32 v1, 4, v9')
    e('v_readfirstlane_b32 s14, v10')
    e('s_and_b32 s15, s2, 7'); e('s_lshr_b32 s16, s2, 3')
    e('s_and_b32 s17, s15, 1'); e('s_lshl_b32 s17, s17, 3'); e('s_and_b32 s18, s16, 7'); e('s_add_u32 s17, s17, s18')
    e('s_lshr_b32 s18, s15, 1'); e('s_lshl_b32 s18, s18, 2'); e('s_lshr_b32 s19, s16, 3'); e('s_add_u32 s18, s18, s19')
    e('s_lshl_b32 s17, s17, 2'); e('s_add_u32 s17, s17, s14')
    e('s_lshl_b32 s19, s17, 15'); e(f's_add_u32 s19, s19, {HBUF}')
    e('s_mul_i32 s20, s18, 229376'); e(f's_add_u32 s20, s20, {WP3}')
    e('s_lshl_b32 s21, s14, 10')
    e('s_add_u32 s20, s20, s21')
    e('v_lshrrev_b32 v11, 5, v0'); e('v_min_u32 v11, 6, v11')
    e('v_and_b32 v12, 31, v0')
    e('v_lshrrev_b32 v13, 4, v12')
    e('s_movk_i32 s22, 1792')
    e('v_mul_u32_u24 v13, s22, v13')
    e('v_lshl_add_u32 v13, v11, 4, v13')
    e('v_and_b32 v14, 15, v12'); e('v_add_u32 v13, v13, v14')
    e('s_mul_i32 s22, s18, 112')
    e('v_add_u32 v13, s22, v13')
    e('v_lshlrev_b32 v13, 2, v13')
    e('v_bfe_u32 v14, v12, 2, 1')
    e('v_lshl_add_u32 v14, v11, 1, v14')
    e('v_lshlrev_b32 v14, 4, v14')
    e('v_and_b32 v15, 3, v12'); e('v_add_u32 v14, v14, v15')
    e('v_lshrrev_b32 v15, 3, v12'); e('v_lshl_add_u32 v14, v15, 2, v14')
    e('v_lshlrev_b32 v14, 2, v14')
    e(f'v_add_u32 v15, {TBL}, v14')
    e('v_mov_b32 v2, v1'); e('v_add_u32 v3, 57344, v1'); e('v_add_u32 v4, 114688, v1')
    e('s_waitcnt lgkmcnt(0)')
    e('s_add_u32 s4, s12, s19'); e('s_addc_u32 s5, s13, 0')
    e('s_add_u32 s6, s12, s20'); e('s_addc_u32 s7, s13, 0')
    e(f's_add_u32 s8, s12, {CSUMP}'); e('s_addc_u32 s9, s13, 0')
    TOK = 16; ACC = 144
    def issue_tok(c):
        for ks in range(4):
            kk = 4 * c + ks
            k.vmem(f'global_load_dwordx4 v[{TOK+4*kk}:{TOK+4*kk+3}], v1, s[4:5] offset:{ks*1024}', f'c{c}')
        add64(k, 4, 4096)
    def issue_dma(c, n0=0, n1=7):
        for n in range(n0, n1):
            e(f's_add_u32 m0, s21, {(c % NSLOT)*CH + n*4096}')
            e('s_nop 0')
            k.vmem('global_load_lds_dwordx4 v1, s[6:7]', f'c{c}')
            add64(k, 6, 4096)
    for c in range(NSLOT):
        issue_tok(c); issue_dma(c)
        if c == 1:
            for g in range(8):
                k.vmem(f'global_load_dword a{32+g}, v13, s[8:9]', 'cs')
                if g < 7: add64(k, 8, 14336)
    for i in range(112): e(f'v_mov_b32 v{ACC+i}, 0')
    for i in range(5, 9): e(f'v_mov_b32 v{i}, 0')
    e(f's_mov_b32 s30, {ONES}')
    PF = 7; R = 8
    NST = 224
    def rd(s):
        c, rem = divmod(s, 28)
        addr = (c % NSLOT) * CH + rem * 1024
        b, off = divmod(addr, 57344)
        a = 4 * (s % R)
        k.ds(f'ds_read_b128 a[{a}:{a+3}], v{2+b} offset:{off}', f'f{s}')
    k.wait(vm='c0'); e('s_barrier')
    for s in range(PF): rd(s)
    for s in range(NST):
        c, rem = divmod(s, 28); ks, j = divmod(rem, 7); kk = 4 * c + ks
        k.wait(lg=f'f{s}')
        a = 4 * (s % R)
        e(f'v_mfma_f32_32x32x16_bf16 v[{ACC+16*j}:{ACC+16*j+15}], a[{a}:{a+3}], v[{TOK+4*kk}:{TOK+4*kk+3}], v[{ACC+16*j}:{ACC+16*j+15}]')
        nxt = s + PF
        if nxt < NST:
            if nxt % 28 == 0:
                cn = nxt // 28
                if cn == 5:
                    k.wait(vm='cs')
                    for g in range(4): e(f'v_accvgpr_read_b32 v{9+g}, a{32+g}')
                    e('v_add_f32 v9, v9, v10'); e('v_add_f32 v11, v11, v12'); e('v_add_f32 v9, v9, v11')
                    for g in range(3): e(f'v_accvgpr_read_b32 v{10+g}, a{36+g}')
                    e('v_add_f32 v9, v9, v10'); e('v_accvgpr_read_b32 v10, a39'); e('v_add_f32 v11, v11, v12')
                    e('v_add_f32 v9, v9, v11'); e('v_add_f32 v9, v9, v10')
                    k.ds('ds_write_b32 v15, v9', 'tbl')
                    k.wait(lg='tbl')
                k.wait(vm=f'c{cn}')
                e('s_barrier')
                if 1 <= cn - 1 <= 3:
                    issue_tok(cn + 3); issue_dma(cn + 3)
            rd(nxt)
        dots = [j] if j < 6 else [6, 7]
        for d in dots:
            rg = TOK + 4 * kk + (d >> 1)
            if d & 1: e(f'v_dot2_f32_bf16 v{7 + ((d>>1)&1)}, v{rg}, v{rg}, v{7 + ((d>>1)&1)}')
            else: e(f'v_dot2_f32_bf16 v{5 + ((d>>1)&1)}, v{rg}, s30, v{5 + ((d>>1)&1)}')
    k.nop(3)
    e('v_add_f32 v5, v5, v6'); e('v_add_f32 v7, v7, v8')
    e('v_mov_b32 v6, v5'); e('v_mov_b32 v8, v7')
    k.nop(1)
    e('v_permlane32_swap_b32 v6, v5'); e('v_permlane32_swap_b32 v8, v7')
    k.nop(1)
    e('v_add_f32 v5, v5, v6'); e('v_add_f32 v7, v7, v8')
    e('v_mul_f32 v5, 0xbb000000, v5')
    e('v_mul_f32 v7, 0x3b000000, v7')
    e('v_fma_f32 v7, -v5, v5, v7')
    e('v_max_f32 v7, 0, v7')
    e('v_add_f32 v7, 0x3727c5ac, v7')
    e('v_rsq_f32 v8, v7')
    e('v_mov_b32 v10, v5')
    e('v_lshrrev_b32 v9, 5, v0'); e('v_and_b32 v9, 1, v9'); e('v_lshlrev_b32 v9, 6, v9')
    e(f'v_add_u32 v9, {TBL}, v9')
    e('v_mul_f32 v12, 0xbfb8aa3b, v8')
    e('s_mul_i32 s22, s17, 112'); e('s_mul_i32 s23, s18, 7'); e('s_add_u32 s22, s22, s23'); e('s_lshl_b32 s22, s22, 10')
    e(f's_add_u32 s22, s22, {HHBUF}')
    e('s_add_u32 s12, s12, s22'); e('s_addc_u32 s13, s13, 0')
    e('v_add_u32 v2, 4096, v1')
    CS = 16
    for j in range(7):
        for q in range(4):
            k.ds(f'ds_read_b128 v[{CS+16*j+4*q}:{CS+16*j+4*q+3}], v9 offset:{j*128+q*16}', f't{j}')
        if j == 2: k.wait(lg='t0')
        if j == 5: k.wait(lg='t2')
    O = 128
    for j in range(7):
        k.wait(lg=f't{j}')
        A = ACC + 16 * j; C = CS + 16 * j
        for p in range(4):
            e(f'v_pk_fma_f32 v[{A+2*p}:{A+2*p+1}], v[{C+2*p}:{C+2*p+1}], v[10:11], v[{A+2*p}:{A+2*p+1}] op_sel_hi:[1,0,1]')
        for p in range(4):
            e(f'v_pk_mul_f32 v[{A+2*p}:{A+2*p+1}], v[{A+2*p}:{A+2*p+1}], v[12:13] op_sel_hi:[1,0]')
        for r in range(8):
            e(f'v_exp_f32 v{A+r}, v{A+r}')
        for p in range(4):
            e(f'v_pk_fma_f32 v[{A+8+2*p}:{A+9+2*p}], v[{C+8+2*p}:{C+9+2*p}], v[10:11], v[{A+8+2*p}:{A+9+2*p}] op_sel_hi:[1,0,1]')
        for r in range(8):
            e(f'v_add_f32 v{A+r}, 1.0, v{A+r}')
        for r in range(8):
            e(f'v_rcp_f32 v{A+r}, v{A+r}')
        for p in range(4):
            e(f'v_pk_mul_f32 v[{A+8+2*p}:{A+9+2*p}], v[{A+8+2*p}:{A+9+2*p}], v[8:9] op_sel_hi:[1,0]')
        for p in range(4):
            e(f'v_pk_mul_f32 v[{A+2*p}:{A+2*p+1}], v[{A+2*p}:{A+2*p+1}], v[{A+8+2*p}:{A+9+2*p}]')
        o = O + 4 * (j & 1)
        for p in range(4):
            e(f'v_cvt_pk_bf16_f32 v{o+p}, v{A+2*p}, v{A+2*p+1}')
        e(f'global_store_dwordx4 v{1 if j < 4 else 2}, v[{o}:{o+3}], s[12:13] offset:{(j&3)*1024}')
    k.label(END)
    e('s_endpgm')
    return k

def gen_k4():
    RK = 14
    k = Kern('k4_kernel', 256, lds=49152, nvgpr=128, nagpr=16 * RK)
    e = k.e
    END = '.L_k4_end'
    e('s_cmp_ge_u32 s2, 256'); e(f's_cbranch_scc1 {END}')
    e(f's_load_dwordx2 s[12:13], s[0:1], {KA["ws"]}')
    e(f's_load_dwordx2 s[26:27], s[0:1], {KA["out"]}')
    e('v_and_b32 v9, 63, v0')
    e('v_lshrrev_b32 v10, 6, v0')
    e('v_lshlrev_b32 v1, 4, v9')
    e('v_readfirstlane_b32 s14, v10')
    e('s_and_b32 s15, s2, 7'); e('s_lshr_b32 s16, s2, 3')
    e('s_and_b32 s17, s15, 1'); e('s_lshl_b32 s17, s17, 2'); e('s_and_b32 s18, s16, 3'); e('s_add_u32 s17, s17, s18')
    e('s_lshr_b32 s18, s15, 1'); e('s_lshl_b32 s18, s18, 3'); e('s_lshr_b32 s19, s16, 2'); e('s_add_u32 s18, s18, s19')
    e('s_and_b32 s24, s14, 1'); e('s_lshr_b32 s25, s14, 1')
    e('s_mul_i32 s19, s14, 28')
    e('s_mul_i32 s20, s17, 112'); e('s_add_u32 s20, s20, s19'); e('s_lshl_b32 s20, s20, 1')
    e('s_add_u32 s21, s20, s24'); e('s_xor_b32 s22, s24, 1'); e('s_add_u32 s22, s20, s22')
    e('s_lshl_b32 s21, s21, 10'); e('s_lshl_b32 s22, s22, 10')
    e(f's_add_u32 s21, s21, {WP4}'); e(f's_add_u32 s22, s22, {WP4}')
    e('s_lshl_b32 s23, s18, 1'); e('s_add_u32 s28, s23, s25')
    e('s_xor_b32 s29, s25, 1'); e('s_add_u32 s29, s23, s29')
    e('s_mul_i32 s30, s28, 112'); e('s_add_u32 s30, s30, s19'); e('s_lshl_b32 s30, s30, 10'); e(f's_add_u32 s30, s30, {HHBUF}')
    e('s_mul_i32 s31, s29, 112'); e('s_add_u32 s31, s31, s19'); e('s_lshl_b32 s31, s31, 10'); e(f's_add_u32 s31, s31, {HHBUF}')
    e('s_waitcnt lgkmcnt(0)')
    for (p, o) in ((4, 21), (6, 22), (8, 30), (10, 31)):
        e(f's_add_u32 s{p}, s12, s{o}'); e(f's_addc_u32 s{p+1}, s13, 0')
    def issue(s):
        a = 16 * (s % RK)
        k.vmem(f'global_load_dwordx4 a[{a}:{a+3}], v1, s[4:5] offset:{(s&1)*2048}', f'k{s}')
        k.vmem(f'global_load_dwordx4 a[{a+8}:{a+11}], v1, s[8:9] offset:{(s&3)*1024}', f'k{s}')
        k.vmem(f'global_load_dwordx4 a[{a+4}:{a+7}], v1, s[6:7] offset:{(s&1)*2048}', f'k{s}')
        k.vmem(f'global_load_dwordx4 a[{a+12}:{a+15}], v1, s[10:11] offset:{(s&3)*1024}', f'k{s}')
        if s & 1: add64(k, 4, 4096); add64(k, 6, 4096)
        if (s & 3) == 3: add64(k, 8, 4096); add64(k, 10, 4096)
    for s in range(RK): issue(s)
    RES = 96
    e('v_and_b32 v2, 31, v9'); e('v_lshrrev_b32 v3, 5, v9')
    e('s_lshl_b32 s20, s17, 4'); e('s_lshl_b32 s21, s24, 3'); e('s_add_u32 s20, s20, s21')
    e('v_lshl_add_u32 v4, v3, 2, s20')
    e('s_lshl_b32 s21, s28, 15'); e(f's_add_u32 s21, s21, {HBUF}')
    e('v_lshl_add_u32 v5, v2, 4, s21')
    LUP = '.L_k4_up'; LJ = '.L_k4_j'
    e('s_cmp_ge_u32 s17, 4'); e(f's_cbranch_scc1 {LUP}')
    e('v_add_u32 v6, 63, v4'); e('v_and_b32 v6, 63, v6')
    e('v_lshl_add_u32 v6, v6, 9, v5')
    e('v_lshl_add_u32 v7, v4, 9, v5')
    e(f'global_load_dword v{RES+1}, v6, s[12:13] offset:4')
    for a in range(4):
        e(f'global_load_dwordx2 v[{RES+2+2*a}:{RES+3+2*a}], v7, s[12:13] offset:{a*512}')
    e(f's_branch {LJ}')
    k.label(LUP)
    e('v_sub_u32 v6, 124, v4')
    e('v_lshl_add_u32 v7, v6, 9, v5')
    e(f'global_load_dword v{RES+1}, v7, s[12:13]')
    for a in range(4):
        e(f'global_load_dwordx2 v[{RES+2+2*a}:{RES+3+2*a}], v7, s[12:13] offset:{(3-a)*512+8}')
    k.label(LJ)
    for _ in range(5): k.vm.append('res')
    ACC = 32
    for i in range(64): e(f'v_mov_b32 v{ACC+i}, 0')
    for s in range(28):
        a = 16 * (s % RK)
        k.wait(vm=f'k{s}')
        for ib in range(2):
            for im in range(2):
                d = ACC + 16 * (im + 2 * ib)
                e(f'v_mfma_f32_32x32x16_bf16 v[{d}:{d+15}], a[{a+4*im}:{a+4*im+3}], a[{a+8+4*ib}:{a+8+4*ib+3}], v[{d}:{d+15}]')
        if s + RK < 28: issue(s + RK)
    for t in range(1, 4):
        e(f's_xor_b32 s20, s14, {t}'); e('s_mul_i32 s20, s20, 12288'); e(f's_add_u32 s20, s20, {(t-1)*4096}')
        e(f'v_add_u32 v{10+t}, s20, v1')
    e('s_mul_i32 s20, s14, 12288'); e('v_add_u32 v10, s20, v1')
    k.nop(4)
    for t in range(1, 4):
        for rq in range(4):
            d = ACC + 16 * t + 4 * rq
            e(f'ds_write_b128 v{10+t}, v[{d}:{d+3}] offset:{rq*1024}')
    e('s_waitcnt lgkmcnt(0)'); e('s_barrier')
    for t in range(3):
        for rq in range(4):
            d = ACC + 16 * (t + 1) + 4 * rq
            k.ds(f'ds_read_b128 v[{d}:{d+3}], v10 offset:{t*4096+rq*1024}', f'r{t}')
    e('v_lshlrev_b32 v6, 16, v2'); e('s_lshl_b32 s20, s28, 10'); e('v_add_u32 v6, s20, v6')
    e('v_lshl_add_u32 v6, v4, 3, v6')
    k.wait(vm='res')
    LUP2 = '.L_k4_up2'; LJ2 = '.L_k4_j2'
    e('s_cmp_ge_u32 s17, 4'); e(f's_cbranch_scc1 {LUP2}')
    for p in range(8):
        e(f'v_alignbit_b32 v{16+p}, v{RES+2+p}, v{RES+1+p}, 16')
    e(f's_branch {LJ2}')
    k.label(LUP2)
    for p in range(8):
        e(f'v_mov_b32 v{16+p}, v{RES+2+p}')
    k.label(LJ2)
    e('s_mov_b32 s20, 0xffff0000')
    for p in range(8):
        e(f'v_lshlrev_b32 v{RES+2*p}, 16, v{16+p}')
        e(f'v_and_b32 v{RES+2*p+1}, s20, v{16+p}')
    for r in range(16):
        e(f'v_add_f32 v{ACC+r}, v{ACC+r}, v{RES+r}')
    for t in range(3):
        k.wait(lg=f'r{t}')
        for r in range(16):
            e(f'v_add_f32 v{ACC+r}, v{ACC+r}, v{ACC+16*(t+1)+r}')
    for p in range(8):
        e(f'v_cvt_pk_bf16_f32 v{16+p}, v{ACC+2*p}, v{ACC+2*p+1}')
    e('global_store_dwordx4 v6, v[16:19], s[26:27]')
    e('global_store_dwordx4 v6, v[20:23], s[26:27] offset:16')
    k.label(END)
    e('s_endpgm')
    return k
```

```python
import sys
sys.path.insert(0, 'dev')
from asmlib import *

CBUF = 0x000000
HBUF = 0x200000
WP3 = 0x400000
CSUMP = 0x780000
WP4 = 0x800000
HHBUF = 0xA00000
KA = dict(x=0, ws_re=8, ws_im=16, wd_re=24, wd_im=32, bx=40, wg=48, wu=56, wdn=64, out=72, dbg=80, ws=88)
ONES = 0x3F803F80

def add64(k, lo, val):
    k.e(f's_add_u32 s{lo}, s{lo}, {val}')
    k.e(f's_addc_u32 s{lo+1}, s{lo+1}, 0')

def gen_k1():
    k = Kern('k1_kernel', 256, lds=132096, nvgpr=160)
    e = k.e
    END = '.L_k1_end'
    e('s_cmp_ge_u32 s2, 256'); e(f's_cbranch_scc1 {END}')
    e(f's_load_dwordx2 s[20:21], s[0:1], {KA["x"]}')
    e(f's_load_dwordx4 s[8:11], s[0:1], {KA["wd_re"]}')
    e(f's_load_dwordx2 s[12:13], s[0:1], {KA["ws"]}')
    e('v_and_b32 v1, 63, v0')
    e('v_lshrrev_b32 v2, 6, v0')
    e('s_and_b32 s15, s2, 31')
    e('v_readfirstlane_b32 s14, v2')
    e('s_lshr_b32 s16, s2, 5')
    e('s_and_b32 s17, s15, 3')
    e('s_lshr_b32 s18, s15, 2')
    e('v_lshrrev_b32 v3, 4, v1')
    e('v_and_b32 v4, 15, v1')
    e('s_and_b32 s24, s14, 1'); e('s_lshr_b32 s25, s14, 1')
    e('s_lshl_b32 s26, s17, 19')
    e('s_lshl_b32 s27, s18, 3'); e('s_lshl_b32 s28, s24, 1'); e('s_add_u32 s27, s27, s28')
    e('s_lshl_b32 s28, s25, 2'); e('s_add_u32 s27, s27, s28'); e('s_lshl_b32 s27, s27, 10')
    e('s_add_u32 s26, s26, s27')
    e('s_lshl_b32 s27, s16, 5'); e('s_add_u32 s27, s27, 1'); e('s_lshl_b32 s28, s24, 4'); e('s_add_u32 s27, s27, s28')
    e('s_lshl_b32 s27, s27, 10')
    for a in range(4):
        e(f'v_add_u32 v5, {4*a}, v3')
        e('v_xor_b32 v5, v5, v4')
        e('v_lshlrev_b32 v5, 4, v5')
        e('v_lshl_add_u32 v6, v3, 16, v5')
        e(f's_add_u32 s28, s26, {(4*(a>>1))*65536 + (a&1)*1024}')
        e(f'v_add_u32 v{8+a}, s28, v6')
        e('v_lshl_add_u32 v6, v3, 10, v5')
        e(f's_add_u32 s28, s27, {4*a*1024}')
        e(f'v_add_u32 v{12+a}, s28, v6')
    e('s_lshl_b32 s29, s14, 12')
    e('s_waitcnt lgkmcnt(0)')
    e('s_cmp_eq_u32 s25, 0')
    e('s_cselect_b32 s22, s8, s10'); e('s_cselect_b32 s23, s9, s11')
    for kq in range(4):
        for a in range(4):
            e(f's_add_u32 m0, s29, {kq*16384 + a*1024}'); e('s_nop 0')
            k.vmem(f'global_load_lds_dwordx4 v{8+a}, s[20:21]', f'q{kq}')
            e(f's_add_u32 m0, s29, {65536 + kq*16384 + a*1024}'); e('s_nop 0')
            k.vmem(f'global_load_lds_dwordx4 v{12+a}, s[22:23]', f'q{kq}')
        if kq < 3:
            add64(k, 20, 256); add64(k, 22, 256)
    e('v_and_b32 v5, 31, v1')
    e('v_lshrrev_b32 v6, 5, v1')
    e('v_xor_b32 v7, v6, v4')
    e('v_lshlrev_b32 v7, 4, v7')
    e('v_lshl_add_u32 v7, v5, 8, v7')
    e('s_lshl_b32 s28, s24, 13')
    e('v_add_u32 v16, s28, v7')
    e('s_lshl_b32 s28, s25, 13'); e('s_add_u32 s28, s28, 65536')
    e('v_add_u32 v24, s28, v7')
    for ks in range(1, 8):
        e(f'v_xor_b32 v{16+ks}, {ks<<5}, v16')
        e(f'v_xor_b32 v{24+ks}, {ks<<5}, v24')
    ACC = 32
    ST = 48
    FR = 64
    for i in range(16): e(f'v_mov_b32 v{ACC+i}, 0')
    for i in range(4): e(f'v_mov_b32 v{ST+i}, 0')
    e(f's_mov_b32 s30, {ONES}')
    LSQ = '.L_k1_sq'; LJ = '.L_k1_join'
    e('s_cmp_eq_u32 s25, 1'); e(f's_cbranch_scc1 {LSQ}')
    vm_save = list(k.vm)
    for variant in range(2):
        k.vm = list(vm_save); k.lg = []
        if variant == 1: k.label(LSQ)
        for kq in range(4):
            k.wait(vm=f'q{kq}')
            e('s_barrier')
            for ks in range(8):
                k.ds(f'ds_read_b128 v[{FR+8*ks}:{FR+8*ks+3}], v{16+ks} offset:{kq*16384}', f'f{ks}')
                k.ds(f'ds_read_b128 v[{FR+8*ks+4}:{FR+8*ks+7}], v{24+ks} offset:{kq*16384}', f'f{ks}')
            for ks in range(8):
                k.wait(lg=f'f{ks}')
                a = FR + 8 * ks
                e(f'v_mfma_f32_32x32x16_bf16 v[{ACC}:{ACC+15}], v[{a}:{a+3}], v[{a+4}:{a+7}], v[{ACC}:{ACC+15}]')
                for i in range(4):
                    src = f'v{a+i}' if variant else 's30'
                    e(f'v_dot2_f32_bf16 v{ST+i}, v{a+i}, {src}, v{ST+i}')
        if variant == 0: e(f's_branch {LJ}')
    k.label(LJ)
    k.nop(3)
    e(f'v_add_f32 v{ST}, v{ST}, v{ST+1}'); e(f'v_add_f32 v{ST+2}, v{ST+2}, v{ST+3}')
    e(f'v_add_f32 v{ST}, v{ST}, v{ST+2}')
    e(f'v_mov_b32 v{ST+1}, v{ST}')
    k.nop(2)
    e(f'v_permlane32_swap_b32 v{ST+1}, v{ST}')
    k.nop(1)
    e(f'v_add_f32 v{ST}, v{ST}, v{ST+1}')
    e('s_lshl_b32 s28, s25, 8'); e('s_lshl_b32 s31, s24, 7'); e('s_add_u32 s28, s28, s31'); e('s_add_u32 s28, s28, 131072')
    e('v_lshlrev_b32 v52, 2, v5')
    e('v_add_u32 v53, s28, v52')
    e(f'ds_write_b32 v53, v{ST}')
    e('s_waitcnt lgkmcnt(0)'); e('s_barrier')
    e('s_add_u32 s28, s31, 131072')
    e('v_add_u32 v53, s28, v52')
    e('ds_read_b32 v54, v53'); e('ds_read_b32 v55, v53 offset:256')
    e('s_waitcnt lgkmcnt(0)')
    e('v_mul_f32 v54, 0x3b000000, v54')
    e('v_mul_f32 v55, 0x3b000000, v55')
    e('v_fma_f32 v55, -v54, v54, v55')
    e('v_max_f32 v55, 0, v55')
    e('v_add_f32 v55, 0x3727c5ac, v55')
    e('v_rsq_f32 v55, v55')
    e('s_lshl_b32 s28, s14, 7'); e('s_add_u32 s28, s28, 131584')
    e('v_add_u32 v53, s28, v52')
    e('ds_write_b32 v53, v55')
    e('v_lshlrev_b32 v56, 4, v6')
    e('v_add_u32 v53, s28, v56')
    e('s_waitcnt lgkmcnt(0)')
    for rq in range(4):
        e(f'ds_read_b128 v[{FR+4*rq}:{FR+4*rq+3}], v53 offset:{rq*32}')
    e('v_lshrrev_b32 v57, 2, v5'); e('v_lshlrev_b32 v57, 15, v57')
    e('v_and_b32 v58, 3, v5'); e('v_lshl_add_u32 v57, v58, 11, v57')
    e('v_add_u32 v57, v57, v56')
    e('s_lshl_b32 s28, s16, 18')
    e('s_lshr_b32 s31, s18, 1'); e('s_lshl_b32 s31, s31, 13'); e('s_add_u32 s28, s28, s31')
    e('s_lshl_b32 s31, s25, 10'); e('s_add_u32 s28, s28, s31')
    e('s_lshl_b32 s31, s17, 8'); e('s_add_u32 s28, s28, s31')
    e('s_and_b32 s31, s18, 1'); e('s_lshl_b32 s31, s31, 7'); e('s_add_u32 s28, s28, s31')
    e('s_lshl_b32 s31, s24, 6'); e('s_add_u32 s28, s28, s31')
    if CBUF: e(f's_add_u32 s28, s28, {CBUF}')
    e('v_add_u32 v57, s28, v57')
    e('s_waitcnt lgkmcnt(0)')
    for r in range(16):
        e(f'v_mul_f32 v{ACC+r}, v{ACC+r}, v{FR+r}')
    for p in range(8):
        e(f'v_cvt_pk_bf16_f32 v{FR+16+p}, v{ACC+2*p}, v{ACC+2*p+1}')
    e(f'global_store_dwordx4 v57, v[{FR+16}:{FR+19}], s[12:13]')
    e(f'global_store_dwordx4 v57, v[{FR+20}:{FR+23}], s[12:13] offset:32')
    k.label(END)
    e('s_endpgm')
    return k

def f2u(x):
    import struct
    return '0x%08x' % struct.unpack('<I', struct.pack('<f', x))[0]

def gen_k2():
    NPG, NPD = 112, 56
    k = Kern('k2_kernel', 256 + NPG + NPD, lds=16384, nvgpr=180)
    e = k.e
    END = '.L_k2_end'; LPG = '.L_k2_pg'; LPD = '.L_k2_pd'
    e(f's_cmp_ge_u32 s2, {256+NPG+NPD}'); e(f's_cbranch_scc1 {END}')
    e(f's_load_dwordx2 s[12:13], s[0:1], {KA["ws"]}')
    e('v_and_b32 v1, 63, v0')
    e('v_lshrrev_b32 v2, 6, v0')
    e('s_nop 0')
    e('v_readfirstlane_b32 s14, v2')
    e(f's_cmp_ge_u32 s2, {256+NPG}'); e(f's_cbranch_scc1 {LPD}')
    e('s_cmp_ge_u32 s2, 256'); e(f's_cbranch_scc1 {LPG}')
    e(f's_load_dwordx2 s[4:5], s[0:1], {KA["x"]}')
    e('s_and_b32 s15, s2, 63')
    e('s_lshr_b32 s16, s2, 6')
    e('v_and_b32 v3, 15, v1')
    e('v_lshrrev_b32 v4, 4, v1')
    e('v_lshlrev_b32 v5, 4, v1')
    e('s_lshl_b32 s17, s15, 15'); e('s_lshl_b32 s18, s14, 13'); e('s_add_u32 s17, s17, s18')
    if CBUF: e(f's_add_u32 s17, s17, {CBUF}')
    e('v_add_u32 v6, s17, v5')
    e('v_add_u32 v7, 4096, v6')
    e('s_and_b32 s24, s14, 1'); e('s_lshr_b32 s25, s14, 1')
    e('s_lshl_b32 s19, s24, 5'); e('s_add_u32 s19, s19, s25')
    e('v_lshl_add_u32 v8, v3, 1, s19')
    e('s_lshl_b32 s19, s16, 3')
    e('v_lshl_add_u32 v9, v4, 1, s19')
    e('v_lshl_add_u32 v10, v8, 5, v9')
    e('v_lshlrev_b32 v10, 10, v10')
    e('s_lshl_b32 s20, s15, 3')
    e('v_add_u32 v11, s20, v10')
    e('s_sub_u32 s21, 1016, s20')
    e('v_add_u32 v12, s21, v10')
    A1 = 32
    XL = 64
    e('s_waitcnt lgkmcnt(0)')
    for f in range(8):
        k.vmem(f'global_load_dwordx4 v[{A1+4*f}:{A1+4*f+3}], v{6 + (f>>2)}, s[12:13] offset:{(f&3)*1024}', f'a{f}')
    for u in range(2):
        k.vmem(f'global_load_dwordx3 v[{XL+8*u}:{XL+8*u+2}], v11, s[4:5] offset:{u*1024}', 'x')
        k.vmem(f'global_load_dwordx2 v[{XL+8*u+4}:{XL+8*u+5}], v12, s[4:5] offset:{u*1024}', 'x')
        k.vmem(f'global_load_ushort v{XL+8*u+6}, v10, s[4:5] offset:{u*1024}', 'x')
    B1 = 80
    TW = 84
    B2 = 100
    T = 16
    e('v_lshrrev_b32 v13, 1, v3'); e('v_add_u32 v13, s19, v13')
    e('v_and_b32 v14, 1, v3')
    e('v_cvt_f32_u32 v15, v13')
    e(f'v_cvt_f32_u32 v{T}, v14')
    e(f'v_cvt_f32_u32 v{T+1}, v4')
    e(f'v_mul_f32 v{T+2}, {f2u(1/32)}, v15')
    e(f'v_mul_f32 v{T+3}, 0x41000000, v{T+1}')
    e(f'v_mul_f32 v{T+3}, v{T+3}, v{T+2}')
    e(f'v_mul_f32 v{T+4}, {f2u(0.25)}, v{T}')
    e(f'v_add_f32 v{T+3}, v{T+3}, v{T+4}')
    for jj in range(8):
        e(f'v_cos_f32 v{T+8+jj}, v{T+3}')
        if jj < 7: e(f'v_add_f32 v{T+3}, v{T+3}, v{T+2}')
    e('s_nop 0')
    for p in range(4):
        e(f'v_cvt_pk_bf16_f32 v{B1+p}, v{T+8+2*p}, v{T+9+2*p}')
    e(f'v_mul_f32 v{T+2}, {f2u(1/2048)}, v15')
    e('s_lshl_b32 s22, s14, 4')
    e(f'v_lshl_add_u32 v{T+3}, v4, 2, s22')
    e(f'v_cvt_f32_u32 v{T+3}, v{T+3}')
    e(f'v_mul_f32 v{T+3}, v{T+3}, v{T+2}')
    e(f'v_sub_f32 v{T+5}, v{T+3}, v{T+4}')
    e(f'v_add_f32 v{T+6}, v{T+3}, v{T+4}')
    e(f'v_subrev_f32 v{T+6}, {f2u(0.25)}, v{T+6}')
    e(f'v_fma_f32 v{T+7}, v{T}, -2.0, 1.0')
    for r in range(4):
        e(f'v_cos_f32 v{TW+r}, v{T+5}')
        e(f'v_cos_f32 v{TW+4+r}, v{T+6}')
        if r < 3:
            e(f'v_add_f32 v{T+5}, v{T+5}, v{T+2}'); e(f'v_add_f32 v{T+6}, v{T+6}, v{T+2}')
    e('s_nop 0')
    for r in range(8):
        e(f'v_mul_f32 v{TW+8+r}, v{TW+r}, v{T+7}')
    e(f'v_cvt_f32_u32 v{T+2}, v8')
    e(f'v_mul_f32 v{T+2}, {f2u(1/64)}, v{T+2}')
    e(f'v_mul_f32 v{T+3}, 4.0, v{T+1}')
    e(f'v_mul_f32 v{T+3}, v{T+3}, v{T+2}')
    e(f'v_mul_f32 v{T+4}, {f2u(13.0)}, v{T+2}')
    for ks in range(4):
        for r in range(4):
            e(f'v_cos_f32 v{T+8}, v{T+3}')
            e(f'v_sin_f32 v{T+9}, v{T+3}')
            e(f'v_add_f32 v{T+3}, v{T+3}, v{T+2 if r < 3 else T+4}')
            e(f'v_cvt_pk_bf16_f32 v{B2+4*ks+r}, v{T+8}, v{T+9}')
    D1 = 116
    for f in range(8):
        k.wait(vm=f'a{f}')
        e(f'v_mfma_f32_16x16x32_bf16 v[{D1+4*f}:{D1+4*f+3}], v[{A1+4*f}:{A1+4*f+3}], v[{B1}:{B1+3}], 0')
    DPP = 'quad_perm:[1,0,3,2] row_mask:0xf bank_mask:0xf'
    e('s_lshl_b32 s22, s14, 10')
    e('v_add_u32 v15, s22, v5')
    k.nop(6)
    for ei in range(4):
        a = D1 + 8 * ei; b = a + 4
        for r in range(4):
            X = T + 2 * r; Y = X + 1
            e(f'v_subrev_f32_dpp v{X}, v{b+r}, v{a+r} {DPP}')
            e(f'v_add_f32_dpp v{Y}, v{a+r}, v{b+r} {DPP}')
        for r in range(4):
            X = T + 2 * r; Y = X + 1
            e(f'v_mul_f32 v{T+8+2*r}, v{TW+r}, v{X}')
            e(f'v_mul_f32 v{T+9+2*r}, v{TW+8+r}, v{Y}')
        for r in range(4):
            X = T + 2 * r; Y = X + 1
            e(f'v_fmac_f32 v{T+8+2*r}, v{TW+4+r}, v{Y}')
            e(f'v_fma_f32 v{T+9+2*r}, -v{TW+12+r}, v{X}, v{T+9+2*r}')
        for r in range(4):
            e(f'v_cvt_pk_bf16_f32 v{A1+4*ei+r}, v{T+8+2*r}, v{T+9+2*r}')
        e(f'ds_write_b128 v15, v[{A1+4*ei}:{A1+4*ei+3}] offset:{ei*4096}')
    e('s_waitcnt lgkmcnt(0)'); e('s_barrier')
    A2 = 116
    D2 = 48
    for half in range(2):
        for ei in range(2 * half, 2 * half + 2):
            for ks in range(4):
                rr = A2 + 16 * (ei & 1) + 4 * ks
                k.ds(f'ds_read_b128 v[{rr}:{rr+3}], v5 offset:{(ei*4+ks)*1024}', f'g{ei}{ks}')
        for ei in range(2 * half, 2 * half + 2):
            for ks in range(4):
                rr = A2 + 16 * (ei & 1) + 4 * ks
                k.wait(lg=f'g{ei}{ks}')
                cin = '0' if ks == 0 else f'v[{D2+4*ei}:{D2+4*ei+3}]'
                e(f'v_mfma_f32_16x16x32_bf16 v[{D2+4*ei}:{D2+4*ei+3}], v[{rr}:{rr+3}], v[{B2+4*ks}:{B2+4*ks+3}], {cin}')
        A2 += 32
    e('s_lshl_b32 s22, s25, 5')
    e('v_add_u32 v13, s22, v9')
    e('v_lshlrev_b32 v13, 15, v13')
    e('v_lshl_add_u32 v13, v3, 4, v13')
    e('s_lshl_b32 s22, s15, 9'); e('s_lshl_b32 s23, s24, 8'); e('s_add_u32 s22, s22, s23'); e(f's_add_u32 s22, s22, {HBUF}')
    e('v_add_u32 v13, s22, v13')
    e('v_add_u32 v14, 0x8000, v13')
    k.wait(vm='x')
    LN63 = '.L_k2_n63'
    e('s_cmp_lg_u32 s15, 63'); e(f's_cbranch_scc1 {LN63}')
    k.nop(8)
    for u in range(2):
        e(f'v_mov_b32 v{XL+8*u+2}, v{XL+8*u+6}')
        e(f'v_mov_b32 v{D2+12+2*u}, 0')
    k.label(LN63)
    k.nop(8)
    e('s_mov_b32 s22, 0xffff0000')
    for u in range(2):
        xl = XL + 8 * u
        srcs = [('hi', xl), ('lo', xl + 1), ('hi', xl + 1), ('lo', xl + 2), ('lo', xl + 4), ('hi', xl + 4), ('lo', xl + 5), ('hi', xl + 5)]
        for i, (part, rg) in enumerate(srcs):
            if part == 'hi': e(f'v_and_b32 v{T+i}, s22, v{rg}')
            else: e(f'v_lshlrev_b32 v{T+i}, 16, v{rg}')
        for i in range(8):
            y = D2 + 4 * i + 2 * u if i < 4 else D2 + 4 * (7 - i) + 2 * u + 1
            e(f'v_add_f32 v{T+i}, v{T+i}, v{y}')
        o = T + 8 + 4 * u
        for p in range(4):
            e(f'v_cvt_pk_bf16_f32 v{o+p}, v{T+2*p}, v{T+2*p+1}')
        e(f'global_store_dwordx4 v{13+u}, v[{o}:{o+3}], s[12:13]')
    e('s_endpgm')

    k.label(LPG)
    k.vm = []; k.lg = []
    e(f's_load_dwordx4 s[4:7], s[0:1], {KA["wg"]}')
    e('s_sub_u32 s15, s2, 256')
    e('s_cmp_ge_u32 s15, 56')
    e('s_cselect_b32 s16, 1, 0')
    e('s_mul_i32 s17, s16, 56'); e('s_sub_u32 s15, s15, s17')
    e('s_lshr_b32 s17, s15, 3')
    e('s_and_b32 s18, s15, 7')
    e('v_and_b32 v3, 31, v1')
    e('v_lshrrev_b32 v4, 5, v1')
    e('s_lshl_b32 s19, s18, 3'); e('s_lshl_b32 s20, s14, 1'); e('s_add_u32 s19, s19, s20')
    e('v_add_u32 v5, s19, v4')
    e('s_lshl_b32 s20, s17, 8')
    e('v_lshl_add_u32 v6, v3, 3, s20')
    e('v_lshlrev_b32 v7, 1, v6')
    e('v_lshlrev_b32 v8, 2, v5')
    e('s_movk_i32 s21, 3584')
    for i in range(4):
        e(f'v_add_u32 v9, {1+i}, v8'); e('v_and_b32 v9, 255, v9')
        e(f'v_mad_u32_u24 v{16+i}, v9, s21, v7')
        e(f'v_sub_u32 v9, {508+i}, v8')
        e(f'v_mad_u32_u24 v{20+i}, v9, s21, v7')
    e('s_waitcnt lgkmcnt(0)')
    e('s_cmp_eq_u32 s16, 0')
    e('s_cselect_b32 s4, s4, s6'); e('s_cselect_b32 s5, s5, s7')
    IN = 32
    for i in range(8):
        e(f'global_load_dwordx4 v[{IN+4*i}:{IN+4*i+3}], v{16+i}, s[4:5]')
    e('s_movk_i32 s21, 2341')
    e('v_mul_u32_u24 v9, s21, v6'); e('v_lshrrev_b32 v9, 18, v9')
    e('s_movk_i32 s21, 112')
    e('v_mul_u32_u24 v10, s21, v9'); e('v_sub_u32 v10, v6, v10')
    e('v_lshrrev_b32 v11, 4, v10')
    e('v_lshrrev_b32 v12, 1, v5')
    e('v_lshl_add_u32 v12, v9, 5, v12')
    e('v_mul_u32_u24 v12, 7, v12'); e('v_add_u32 v12, v12, v11')
    e('v_lshlrev_b32 v12, 10, v12')
    e('v_lshl_add_u32 v12, v4, 9, v12')
    e('v_and_b32 v10, 15, v10')
    e('v_lshl_add_u32 v12, v10, 4, v12')
    e('s_lshl_b32 s21, s16, 8'); e(f's_add_u32 s21, s21, {WP3}')
    e('v_add_u32 v12, s21, v12')
    e('s_mov_b32 s22, 0x05040100'); e('s_mov_b32 s23, 0x07060302'); e(f's_mov_b32 s24, {ONES}')
    OUT = 64; SUM = 96
    e('s_waitcnt vmcnt(0)')
    for jf in range(8):
        for p in range(4):
            e(f'v_perm_b32 v{OUT+4*jf+p}, v{IN+4*(2*p+1)+(jf>>1)}, v{IN+4*(2*p)+(jf>>1)}, s{22+(jf&1)}')
        e(f'global_store_dwordx4 v12, v[{OUT+4*jf}:{OUT+4*jf+3}], s[12:13] offset:{jf*16}')
    for jf in range(8):
        e(f'v_mov_b32 v{SUM+jf}, 0')
    for p in range(4):
        for jf in range(8):
            e(f'v_dot2_f32_bf16 v{SUM+jf}, v{OUT+4*jf+p}, s24, v{SUM+jf}')
    e('s_lshl_b32 s21, s14, 11')
    e('v_lshlrev_b32 v13, 10, v4'); e('v_lshl_add_u32 v13, v3, 5, v13'); e('v_add_u32 v13, s21, v13')
    k.nop(2)
    e(f'ds_write_b128 v13, v[{SUM}:{SUM+3}]'); e(f'ds_write_b128 v13, v[{SUM+4}:{SUM+7}] offset:16')
    e('s_waitcnt lgkmcnt(0)'); e('s_barrier')
    e('v_lshlrev_b32 v13, 2, v0')
    for g in range(8):
        e(f'ds_read_b32 v{IN+g}, v13 offset:{g*1024}')
    e('s_lshl_b32 s21, s18, 1'); e('s_add_u32 s21, s21, s16'); e('s_mul_i32 s21, s21, 1792')
    e('s_add_u32 s21, s21, s20'); e('s_lshl_b32 s21, s21, 2'); e(f's_add_u32 s21, s21, {CSUMP}')
    e('v_add_u32 v13, s21, v13')
    e('s_waitcnt lgkmcnt(0)')
    for g in range(1, 8):
        e(f'v_add_f32 v{IN}, v{IN}, v{IN+g}')
    e(f'global_store_dword v13, v{IN}, s[12:13]')
    e('s_endpgm')

    k.label(LPD)
    e(f's_load_dwordx2 s[4:5], s[0:1], {KA["wdn"]}')
    e(f's_sub_u32 s15, s2, {256+NPG}')
    e('s_lshl_b32 s15, s15, 2'); e('s_add_u32 s15, s15, s14')
    e('s_lshr_b32 s16, s15, 1')
    e('s_and_b32 s17, s15, 1')
    e('s_lshl_b32 s18, s16, 4'); e('s_lshl_b32 s19, s17, 2'); e('s_add_u32 s18, s18, s19')
    e('s_lshl_b32 s18, s18, 10')
    e('v_lshlrev_b32 v3, 4, v1')
    e('v_add_u32 v3, s18, v3')
    e('v_add_u32 v4, 8192, v3')
    e('s_waitcnt lgkmcnt(0)')
    for i in range(8):
        e(f'global_load_dwordx4 v[{IN+4*i}:{IN+4*i+3}], v{3+(i>>2)}, s[4:5] offset:{(i&3)*1024}')
    e('v_lshrrev_b32 v5, 3, v1')
    e('s_movk_i32 s21, 112')
    e('v_mul_u32_u24 v5, s21, v5'); e('v_add_u32 v5, s16, v5')
    e('v_bfe_u32 v6, v1, 2, 1')
    e('v_lshl_add_u32 v5, v5, 1, v6')
    e('v_lshlrev_b32 v5, 10, v5')
    e('v_bfe_u32 v6, v1, 1, 1')
    e('v_lshl_add_u32 v5, v6, 6, v5')
    e('v_and_b32 v6, 1, v1')
    e('v_lshl_add_u32 v5, v6, 8, v5')
    e('s_lshl_b32 s21, s17, 9'); e(f's_add_u32 s21, s21, {WP4}')
    e('v_add_u32 v5, s21, v5')
    e('s_mov_b32 s22, 0x05040100'); e('s_mov_b32 s23, 0x07060302')
    e('s_waitcnt vmcnt(0)')
    for jc in range(8):
        for p in range(4):
            e(f'v_perm_b32 v{OUT+4*jc+p}, v{IN+4*(2*p+1)+(jc>>1)}, v{IN+4*(2*p)+(jc>>1)}, s{22+(jc&1)}')
        e(f'global_store_dwordx4 v5, v[{OUT+4*jc}:{OUT+4*jc+3}], s[12:13] offset:{(jc&3)*16 + (jc>>2)*128}')
    k.label(END)
    e('s_endpgm')
    return k

HEADER = open('sequential_preLN__spectral_fnet__glu_gated_glu__prompt.s.ref').read().split('; Override')[0]

if __name__ == '__main__':
    assert all(((f * 2341) >> 18) == f // 112 for f in range(0, 1792, 8))
    ks = [gen_k1(), gen_k2()]
    try:
        from gen34 import gen_k3, gen_k4
        ks += [gen_k3(), gen_k4()]
    except ImportError:
        pass
    for k in ks:
        for p in lint(k): print('LINT', p)
    out = sys.argv[1] if len(sys.argv) > 1 else 'out.s'
    open(out, 'w').write(assemble_file(ks, HEADER))
    print('wrote', out)
```

```python
import re, os
STAMPS = bool(os.environ.get('STAMPS'))
STFLAG = os.environ.get('STFLAG', '')

class Kern:
    def __init__(self, name, grid, block=256, lds=0, nvgpr=256, nagpr=0, nsgpr=102):
        self.name, self.grid, self.block, self.lds = name, grid, block, lds
        self.nvgpr, self.nagpr, self.nsgpr = nvgpr, nagpr, nsgpr
        self.L = []
        self.vm = []
        self.lg = []
        self.nlab = 0
        self.nst = 0
    def e(self, s):
        for line in s.strip().split('\n'):
            line = line.strip()
            if STFLAG and line.startswith('global_store') and 's[12:13]' in line: line += ' ' + STFLAG
            if line: self.L.append(line)
    def c(self, s): self.L.append('; ' + s)
    def label(self, l): self.L.append(f'{l}:')
    def newlabel(self, base='L'):
        self.nlab += 1
        return f'.{base}_{self.name}_{self.nlab}'
    def vmem(self, s, tag=None):
        self.e(s); self.vm.append(tag)
    def ds(self, s, tag=None):
        self.e(s); self.lg.append(tag)
    def _cnt(self, q, tags):
        if not isinstance(tags, (list, tuple, set)): tags = [tags]
        idx = -1
        for i, t in enumerate(q):
            if t in tags: idx = i
        return idx
    def wait(self, vm=None, lg=None, force=False):
        parts = []
        if vm is not None:
            if vm == 'all':
                if self.vm or force: parts.append('vmcnt(0)'); self.vm = []
            else:
                idx = self._cnt(self.vm, vm)
                if idx >= 0:
                    n = len(self.vm) - 1 - idx
                    assert n <= 63
                    parts.append(f'vmcnt({n})'); self.vm = self.vm[idx + 1:]
        if lg is not None:
            if lg == 'all':
                if self.lg or force: parts.append('lgkmcnt(0)'); self.lg = []
            else:
                idx = self._cnt(self.lg, lg)
                if idx >= 0:
                    n = len(self.lg) - 1 - idx
                    if n > 15: n = 15
                    assert len(self.lg) - 1 - idx <= 15, 'lgkm overflow'
                    parts.append(f'lgkmcnt({n})'); self.lg = self.lg[idx + 1:]
        if parts: self.e('s_waitcnt ' + ' '.join(parts))
    def nop(self, n):
        while n > 0:
            k = min(n, 16); self.e(f's_nop {k-1}'); n -= k
    def stamp(self):
        if not STAMPS: return
        if self.nst == 0: self.e('s_memrealtime s[96:97]')
        assert self.nst < 14
        self.e(f's_memtime s[{64+2*self.nst}:{65+2*self.nst}]')
        self.nst += 1
    def stamp_flush(self, kidx, wave_sgpr='s14'):
        if not STAMPS: return
        self.stamp()
        e = self.e
        e('s_memrealtime s[98:99]')
        e('s_load_dwordx2 s[100:101], s[0:1], 88')
        e(f's_lshl_b32 s94, s2, 2'); e(f's_add_u32 s94, s94, {wave_sgpr}'); e('s_lshl_b32 s94, s94, 6')
        e(f's_add_u32 s94, s94, {0x2000000 + kidx * 0x100000}')
        e('s_waitcnt lgkmcnt(0) vmcnt(0)')
        e('s_memrealtime s[92:93]')
        e('s_waitcnt lgkmcnt(0)')
        e('v_mov_b32 v0, s94')
        vals = ['s96', 's98', 's92'] + [f's{64+2*i}' for i in range(self.nst)]
        for i, v in enumerate(vals):
            e(f'v_mov_b32 v1, {v}')
            e(f'global_store_dword v0, v1, s[100:101] offset:{4*i}')
            e('s_nop 1')
    def text(self):
        out = [f'.globl {self.name}', '.p2align 8', f'.type {self.name},@function', f'{self.name}:']
        for l in self.L:
            out.append(l if l.endswith(':') else '    ' + l)
        return '\n'.join(out)
    def desc(self):
        ao = (self.nvgpr + 3) // 4 * 4
        nf = ao + self.nagpr if self.nagpr else self.nvgpr
        return '\n'.join(['.p2align 6', f'.amdhsa_kernel {self.name}', f'  .amdhsa_next_free_vgpr {nf}', f'  .amdhsa_next_free_sgpr {self.nsgpr}',
                          f'  .amdhsa_accum_offset {ao}', '  .amdhsa_group_segment_fixed_size 0', '  .amdhsa_kernarg_size 96',
                          '  .amdhsa_user_sgpr_count 2', '  .amdhsa_user_sgpr_kernarg_segment_ptr 1', '  .amdhsa_system_sgpr_workgroup_id_x 1',
                          '.end_amdhsa_kernel'])

def assemble_file(kerns, header='', launches=None):
    L = []
    if header: L.append(header.rstrip())
    for k in (launches or kerns):
        L.append(f'; @launch kernel={k.name} grid=({k.grid},1,1) block=({k.block},1,1) lds={k.lds}')
    L.append('.amdgcn_target "amdgcn-amd-amdhsa--gfx950"')
    L.append('.text')
    for k in kerns: L.append(k.text())
    L.append('code_end_marker:')
    L.append('.section .rodata,"a"')
    for k in kerns: L.append(k.desc())
    return '\n'.join(L) + '\n'

_reg = re.compile(r'\b([vas])(\d+)\b|\b([vas])\[(\d+):(\d+)\]')
def regs_of(op):
    out = set()
    for m in _reg.finditer(op):
        if m.group(1): out.add((m.group(1), int(m.group(2))))
        else:
            for i in range(int(m.group(4)), int(m.group(5)) + 1): out.add((m.group(3), i))
    if re.search(r'\bvcc\b', op): out.add(('s', 'vcc'))
    if re.search(r'\bm0\b', op): out.add(('s', 'm0'))
    if re.search(r'\bexec\b', op): out.add(('s', 'exec'))
    return out

TRANS = ('v_exp_', 'v_log_', 'v_rcp_', 'v_rsq_', 'v_sqrt_', 'v_sin_', 'v_cos_')
def parse(line):
    line = line.split(';')[0].strip()
    if not line or line.endswith(':') or line.startswith('.'): return None
    parts = line.split(None, 1)
    mn = parts[0]; rest = parts[1] if len(parts) > 1 else ''
    ops = [o.strip() for o in re.split(r',(?![^\[]*\])', rest)] if rest else []
    d = dict(mn=mn, line=line, w=set(), r=set(), cls='other', ops=ops)
    if mn.startswith('v_mfma'):
        d['cls'] = 'mfma'; d['w'] = regs_of(ops[0]); d['ra'] = regs_of(ops[1]) | regs_of(ops[2]); d['rc'] = regs_of(ops[3]); d['r'] = d['ra'] | d['rc']
        d['passes'] = 8 if '32x32x16' in mn else (4 if '16x16x32' in mn else 16)
    elif mn.startswith('v_'):
        d['cls'] = 'valu'
        if mn.startswith('v_cmp'):
            d['w'] = regs_of(ops[0]); d['r'] = set().union(*[regs_of(o) for o in ops[1:]])
        elif mn.startswith('v_permlane'):
            d['w'] = regs_of(ops[0]) | regs_of(ops[1]); d['r'] = set(d['w']); d['perm'] = True
        else:
            d['w'] = regs_of(ops[0]); d['r'] = set().union(*[regs_of(o) for o in ops[1:]]) if len(ops) > 1 else set()
            if '_co_' in mn: d['w'] |= regs_of(ops[1])
            if mn.startswith(('v_fmac', 'v_dot2c', 'v_pk_fmac')): d['r'] |= d['w']
            if mn.startswith('v_cndmask') and len(ops) == 3: d['r'].add(('s', 'vcc'))
        d['trans'] = mn.startswith(TRANS)
        d['dpp'] = '_dpp' in mn or 'quad_perm' in line or 'row_' in line
        d['dot'] = mn.startswith('v_dot')
        d['rfl'] = mn.startswith(('v_readfirstlane', 'v_readlane'))
    elif mn.startswith(('global_', 'buffer_', 'flat_')):
        d['cls'] = 'vmem'
        if '_lds_' in mn or line.rstrip().endswith(' lds'):
            d['r'] = set().union(*[regs_of(o) for o in ops]); d['r'].add(('s', 'm0')); d['dma'] = True
        elif 'load' in mn:
            d['w'] = regs_of(ops[0]); d['r'] = set().union(*[regs_of(o) for o in ops[1:]])
        else:
            d['r'] = set().union(*[regs_of(o) for o in ops])
            if 'x3' in mn or 'x4' in mn:
                d['widestore'] = regs_of(ops[1]) if mn.startswith('global') else regs_of(ops[0])
    elif mn.startswith('ds_'):
        d['cls'] = 'ds'
        if 'read' in mn or 'permute' in mn or 'swizzle' in mn:
            d['w'] = regs_of(ops[0]); d['r'] = set().union(*[regs_of(o) for o in ops[1:]])
        else:
            d['r'] = set().union(*[regs_of(o) for o in ops])
    elif mn.startswith('s_'):
        d['cls'] = 'salu'
        if mn in ('s_nop',): d['nop'] = int(ops[0], 0) + 1
        elif mn.startswith(('s_waitcnt', 's_barrier', 's_endpgm', 's_branch', 's_cbranch', 's_setprio', 's_sleep')): pass
        elif mn.startswith('s_cmp'): d['r'] = set().union(*[regs_of(o) for o in ops])
        else:
            d['w'] = regs_of(ops[0]); d['r'] = set().union(*[regs_of(o) for o in ops[1:]]) if len(ops) > 1 else set()
            if 'saveexec' in mn: d['w'].add(('s', 'exec'))
    return d

def lint(kern):
    ins = [p for p in (parse(l) for l in kern.L) if p]
    probs = []
    for i, c in enumerate(ins):
        dist = 0
        for jx in range(i - 1, max(-1, i - 25), -1):
            p = ins[jx]
            need = 0; why = ''
            def chk(n, w):
                nonlocal need, why
                if n > need: need, why = n, w
            vw = {r for r in p['w'] if r[0] in 'va'}; sw = {r for r in p['w'] if r[0] == 's'}
            if p['cls'] == 'valu':
                if c['cls'] == 'mfma' and vw & c['r']: chk(2, 'valu->mfma')
                if c['cls'] == 'valu':
                    if c.get('dpp') and vw & c['r']: chk(2, 'valu->dpp')
                    if c.get('perm') and vw & c['r']: chk(2, 'valu->permlane')
                    if c.get('rfl') and vw & c['r']: chk(1, 'valu->readlane')
                    if p.get('trans') and not c.get('trans') and vw & c['r']: chk(1, 'trans->valu')
                    if p.get('dot') and (vw & (c['r'] | c['w'])) and not (c['mn'] == p['mn'] and not (vw & (regs_of(c['ops'][1]) | regs_of(c['ops'][2])))): chk(3, 'dot->other')
                    if sw & c['r']: chk(2, 'valu sgpr->valu')
                if p.get('trans') and c['cls'] in ('mfma', 'vmem', 'ds') and vw & c['r']: chk(2 if c['cls']=='mfma' else 1, 'trans->x')
                if p.get('dot') and c['cls'] in ('mfma', 'vmem', 'ds') and vw & c['r']: chk(3, 'dot->other')
                if c['cls'] == 'vmem' and sw & c['r']: chk(5, 'valu sgpr->vmem')
                if c['cls'] == 'salu' and sw & c['r']: chk(1, 'valu sgpr->salu(pad)')
            if p['cls'] == 'mfma':
                ps = p['passes']
                tbl_ab = {2: 5, 4: 8, 8: 12, 16: 20}[ps]
                if c['cls'] == 'mfma':
                    if vw & c['ra']: chk(tbl_ab, 'mfma->mfma AB')
                    if vw & c['rc']:
                        if not (c['rc'] == vw and c['passes'] == ps): chk({2: 4, 4: 6, 8: 10, 16: 18}[ps], 'mfma->mfma C overlap')
                    elif vw & c['w']: chk(tbl_ab, 'mfma WAW mfma')
                elif c['cls'] in ('valu', 'vmem', 'ds'):
                    if vw & (c['r'] | c['w']): chk(tbl_ab, 'mfma->valu/mem')
                if c['cls'] == 'valu' and (p['rc'] & c['w']): chk({2: 1, 4: 3, 8: 7, 16: 15}[ps], 'mfma srcC WAR')
            if p['cls'] == 'salu' and ('s', 'm0') in p['w'] and c.get('dma'): chk(1, 'm0->dma')
            if p.get('widestore') and (p['widestore'] & c['w']) and c['cls'] in ('valu', 'mfma', 'vmem', 'ds'): chk(2, 'widestore WAR')
            if need > dist:
                probs.append(f"{kern.name}: need {need} have {dist} [{why}]\n    P: {p['line']}\n    C: {c['line']}")
            dist += p.get('nop', 1)
            if dist >= 20: break
    return probs
```

```python
import sys
sys.path.insert(0, 'dev')
from asmlib import *
from gen import *

NPG, NPD = 112, 56
DPPX = 'quad_perm:[1,0,3,2] row_mask:0xf bank_mask:0xf'

def emit_prepack_gu(k, pid_sgpr):
    e = k.e
    e(f's_load_dwordx4 s[4:7], s[0:1], {KA["wg"]}')
    e(f's_mul_i32 s16, {pid_sgpr}, 9363'); e('s_lshr_b32 s16, s16, 16')
    e('s_mul_i32 s17, s16, 7'); e(f's_sub_u32 s17, {pid_sgpr}, s17')
    e('s_lshr_b32 s18, s14, 1')
    e('s_and_b32 s19, s14, 1')
    e('v_lshrrev_b32 v2, 5, v1')
    e('v_and_b32 v3, 31, v1')
    e('v_lshlrev_b32 v3, 4, v3')
    e('s_lshl_b32 s20, s17, 9')
    e('v_add_u32 v3, s20, v3')
    e('s_lshl_b32 s21, s16, 2'); e('s_lshl_b32 s22, s19, 1'); e('s_add_u32 s21, s21, s22')
    e('s_lshl_b32 s21, s21, 2')
    e('s_movk_i32 s23, 3584')
    for n in range(8):
        g = n >> 2; i0 = (2 * n) & 7
        if i0 < 4:
            e(f's_add_u32 s24, s21, {4*g + 1 + i0}')
            e('v_add_u32 v4, s24, v2'); e('v_and_b32 v4, 255, v4')
        else:
            e(f's_sub_u32 s24, {508 - 4*g + i0 - 4}, s21')
            e('v_add_u32 v4, s24, v2')
        e(f'v_mad_u32_u24 v{8+n}, v4, s23, v3')
    e('s_lshl_b32 s25, s14, 13')
    e('s_waitcnt lgkmcnt(0)')
    e('s_cmp_eq_u32 s18, 0')
    e('s_cselect_b32 s4, s4, s6'); e('s_cselect_b32 s5, s5, s7')
    for n in range(8):
        e(f's_add_u32 m0, s25, {n*1024}'); e('s_nop 0')
        e(f'global_load_lds_dwordx4 v{8+n}, s[4:5]')
    e('v_bfe_u32 v4, v1, 4, 1'); e('v_lshlrev_b32 v4, 14, v4')
    e('v_lshl_add_u32 v4, v2, 12, v4')
    e('v_bfe_u32 v5, v1, 2, 2'); e('v_lshl_add_u32 v4, v5, 9, v4')
    e('v_and_b32 v5, 3, v1'); e('v_lshl_add_u32 v4, v5, 3, v4')
    e('s_lshl_b32 s24, s14, 7')
    e('v_add_u32 v4, s24, v4')
    e('v_lshlrev_b32 v6, 4, v1')
    e(f's_mov_b32 s30, {ONES}')
    e('s_waitcnt vmcnt(0)'); e('s_barrier')
    D = 16
    for jl in range(4):
        for kkl in range(2):
            d = D + 4 * (2 * jl + kkl)
            for t in range(2):
                e(f'ds_read_b64_tr_b16 v[{d+2*t}:{d+2*t+1}], v4 offset:{kkl*8192 + t*2048 + jl*32}')
    for jl in range(4):
        e('s_lshl_b32 s24, s17, 4'); e('s_lshl_b32 s26, s14, 2'); e('s_add_u32 s24, s24, s26'); e(f's_add_u32 s24, s24, {jl}')
        e('s_mul_i32 s26, s24, 9363'); e('s_lshr_b32 s26, s26, 16')
        e('s_mul_i32 s27, s26, 7'); e('s_sub_u32 s27, s24, s27')
        e('s_lshl_b32 s26, s26, 5'); e('s_lshl_b32 s28, s16, 1'); e('s_add_u32 s26, s26, s28')
        e('s_mul_i32 s26, s26, 7'); e('s_add_u32 s26, s26, s27'); e('s_lshl_b32 s26, s26, 10')
        e(f's_add_u32 s26, s26, {WP3}')
        e('s_add_u32 s8, s12, s26'); e('s_addc_u32 s9, s13, 0')
        e(f's_add_u32 s10, s8, 7168'); e('s_addc_u32 s11, s9, 0')
        e(f's_waitcnt lgkmcnt({12 - 4*jl})')
        d = D + 8 * jl
        e(f'global_store_dwordx4 v6, v[{d}:{d+3}], s[8:9]' + WT)
        e(f'global_store_dwordx4 v6, v[{d+4}:{d+7}], s[10:11]' + WT)
        e(f'v_mov_b32 v{48+jl}, 0')
        for p in range(8):
            e(f'v_dot2_f32_bf16 v{48+jl}, v{d+p}, s30, v{48+jl}')
    k.nop(3)
    for jl in range(4): e(f'v_mov_b32 v{52+jl}, v{48+jl}')
    k.nop(1)
    for jl in range(4): e(f'v_permlane32_swap_b32 v{52+jl}, v{48+jl}')
    k.nop(1)
    for jl in range(4): e(f'v_add_f32 v{48+jl}, v{48+jl}, v{52+jl}')
    e('v_cmp_gt_u32 vcc, 32, v1')
    k.nop(2)
    e('v_cndmask_b32 v52, v50, v48, vcc'); e('v_cndmask_b32 v53, v51, v49, vcc')
    e('s_mul_i32 s24, s16, 112'); e('s_lshl_b32 s26, s17, 4'); e('s_add_u32 s24, s24, s26'); e('s_lshl_b32 s26, s14, 2'); e('s_add_u32 s24, s24, s26')
    e('s_lshl_b32 s24, s24, 7'); e(f's_add_u32 s24, s24, {CSUMP}')
    e('v_and_b32 v5, 31, v1'); e('v_lshlrev_b32 v5, 2, v5'); e('v_lshl_add_u32 v5, v2, 8, v5')
    e('v_add_u32 v5, s24, v5')
    e('global_store_dword v5, v52, s[12:13]')
    e('global_store_dword v5, v53, s[12:13] offset:128')

def emit_prepack_dn(k, pid_sgpr):
    e = k.e
    e(f's_load_dwordx2 s[4:5], s[0:1], {KA["wdn"]}')
    e(f's_lshl_b32 s16, {pid_sgpr}, 15'); e('s_lshl_b32 s25, s14, 13'); e('s_add_u32 s16, s16, s25')
    e('v_lshlrev_b32 v6, 4, v1')
    e('v_add_u32 v3, s16, v6'); e('v_add_u32 v7, 4096, v3')
    e('s_waitcnt lgkmcnt(0)')
    for n in range(8):
        e(f's_add_u32 m0, s25, {(n>>2)*4096}'); e('s_nop 0')
        e(f'global_load_lds_dwordx4 v{3 if n < 4 else 7}, s[4:5] offset:{(n&3)*1024}')
    e('v_lshrrev_b32 v2, 5, v1')
    e('v_lshlrev_b32 v4, 12, v2')
    e('v_bfe_u32 v5, v1, 2, 2'); e('v_lshl_add_u32 v4, v5, 10, v4')
    e('v_bfe_u32 v5, v1, 4, 1'); e('v_lshl_add_u32 v4, v5, 4, v4')
    e('v_and_b32 v5, 1, v1'); e('v_lshl_add_u32 v4, v5, 5, v4')
    e('v_bfe_u32 v5, v1, 1, 1'); e('v_lshl_add_u32 v4, v5, 3, v4')
    e('s_lshl_b32 s24, s14, 8')
    e('v_add_u32 v4, s24, v4')
    e('s_waitcnt vmcnt(0)'); e('s_barrier')
    D = 16
    for nbl in range(2):
        for kfl in range(2):
            for mt in range(2):
                d = D + 4 * (4 * nbl + 2 * kfl + mt)
                for t in range(2):
                    e(f'ds_read_b64_tr_b16 v[{d+2*t}:{d+2*t+1}], v4 offset:{kfl*16384 + t*8192 + nbl*128 + mt*64}')
    for nbl in range(2):
        e('s_lshl_b32 s24, s14, 1'); e(f's_add_u32 s24, s24, {nbl}'); e('s_mul_i32 s24, s24, 112')
        e(f's_lshl_b32 s26, {pid_sgpr}, 1'); e('s_add_u32 s24, s24, s26'); e('s_lshl_b32 s24, s24, 11')
        e(f's_add_u32 s24, s24, {WP4}')
        e('s_add_u32 s8, s12, s24'); e('s_addc_u32 s9, s13, 0')
        e(f's_waitcnt lgkmcnt({8 - 8*nbl})')
        for q in range(4):
            d = D + 4 * (4 * nbl + q)
            e(f'global_store_dwordx4 v6, v[{d}:{d+3}], s[8:9] offset:{q*1024}' + WT)

WT = ' sc1'

def gen_k1(pre_gu=True, pre_dn=True):
    ngu = NPG if pre_gu else 0; ndn = NPD if pre_dn else 0
    k = Kern('k1_kernel', 256 + ngu + ndn, lds=32768, nvgpr=128)
    e = k.e
    END = '.L_k1_end'; LPG = '.L_k1_pg'; LPD = '.L_k1_pd'
    e(f's_cmp_ge_u32 s2, {256+ngu+ndn}'); e(f's_cbranch_scc1 {END}')
    k.stamp()
    e(f's_load_dwordx2 s[12:13], s[0:1], {KA["ws"]}')
    e('v_and_b32 v1, 63, v0')
    e('v_lshrrev_b32 v2, 6, v0')
    e('s_nop 0')
    e('v_readfirstlane_b32 s14, v2')
    if pre_dn: e(f's_cmp_ge_u32 s2, {256+ngu}'); e(f's_cbranch_scc1 {LPD}')
    if pre_gu: e('s_cmp_ge_u32 s2, 256'); e(f's_cbranch_scc1 {LPG}')
    e(f's_load_dwordx2 s[4:5], s[0:1], {KA["x"]}')
    e('s_lshr_b32 s15, s2, 5'); e('s_bfe_u32 s16, s2, 0x30002'); e('s_lshl_b32 s16, s16, 3'); e('s_add_u32 s15, s15, s16')
    e('s_and_b32 s16, s2, 3')
    e('s_lshl_b32 s17, s16, 3'); e('s_lshl_b32 s18, s14, 1'); e('s_add_u32 s17, s17, s18'); e('s_lshl_b32 s17, s17, 6')
    e('s_add_u32 s17, s17, s15'); e('s_lshl_b32 s17, s17, 10')
    e('v_lshlrev_b32 v3, 4, v1')
    e('v_add_u32 v4, s17, v3'); e('v_add_u32 v5, 0x10000, v4')
    X = 8
    e('s_waitcnt lgkmcnt(0)')
    k.vmem(f'global_load_dwordx4 v[{X}:{X+3}], v4, s[4:5]', 'x0')
    k.vmem(f'global_load_dwordx4 v[{X+4}:{X+7}], v5, s[4:5]', 'x1')
    k.stamp()
    BA = 16
    AB = 20
    TC = 28
    TS = 44
    SG = 60
    T = 64
    e('v_bfe_u32 v6, v1, 1, 4')
    e('v_and_b32 v7, 1, v1')
    e('v_lshrrev_b32 v2, 5, v1')
    e(f'v_cvt_f32_u32 v{T}, v6'); e(f'v_cvt_f32_u32 v{T+1}, v7'); e(f'v_cvt_f32_u32 v{T+2}, v2')
    e(f'v_fma_f32 v{SG}, v{T+1}, -2.0, 1.0')
    e(f'v_mul_f32 v{T+3}, {f2u(1/16)}, v{T}')
    e(f'v_mul_f32 v{T+4}, {f2u(8.0)}, v{T+2}')
    e(f'v_mul_f32 v{T+4}, v{T+4}, v{T+3}')
    e(f'v_fmac_f32 v{T+4}, {f2u(0.25)}, v{T+1}')
    for j in range(8):
        e(f'v_cos_f32 v{T+8+j}, v{T+4}')
        if j < 7: e(f'v_add_f32 v{T+4}, v{T+4}, v{T+3}')
    e('s_nop 0')
    for p in range(4): e(f'v_cvt_pk_bf16_f32 v{BA+p}, v{T+8+2*p}, v{T+9+2*p}')
    e(f'v_mul_f32 v{T+3}, {f2u(1/512)}, v{T}')
    e(f'v_mul_f32 v{T+5}, v{T+3}, v{SG}')
    e(f'v_mul_f32 v{T+6}, {f2u(5.0)}, v{T+3}'); e(f'v_mul_f32 v{T+7}, {f2u(5.0)}, v{T+5}')
    e(f'v_mul_f32 v{T+4}, 4.0, v{T+2}')
    e(f'v_mul_f32 v{T+8}, v{T+4}, v{T+3}'); e(f'v_mul_f32 v{T+9}, v{T+4}, v{T+5}')
    for r in range(16):
        e(f'v_cos_f32 v{TC+r}, v{T+8}'); e(f'v_sin_f32 v{TS+r}, v{T+9}')
        if r < 15:
            big = (r & 3) == 3
            e(f'v_add_f32 v{T+8}, v{T+8}, v{T+6 if big else T+3}'); e(f'v_add_f32 v{T+9}, v{T+9}, v{T+7 if big else T+5}')
    e('v_and_b32 v6, 15, v1'); e('v_bfe_u32 v7, v1, 4, 1')
    e(f'v_cvt_f32_u32 v{T}, v6'); e(f'v_cvt_f32_u32 v{T+1}, v7')
    e(f'v_mul_f32 v{T+3}, {f2u(1/32)}, v{T}')
    e(f'v_mul_f32 v{T+6}, {f2u(5.0)}, v{T+3}')
    e(f'v_mul_f32 v{T+8}, v{T+4}, v{T+3}')
    e(f'v_fmac_f32 v{T+8}, {f2u(-0.25)}, v{T+1}')
    for r in range(16):
        e(f'v_cos_f32 v{T+10+(r&1)}, v{T+8}')
        if r < 15: e(f'v_add_f32 v{T+8}, v{T+8}, v{T+6 if (r&3)==3 else T+3}')
        else: e('s_nop 0')
        if r & 1: e(f'v_cvt_pk_bf16_f32 v{AB+(r>>1)}, v{T+10}, v{T+11}')
    e('s_lshl_b32 s18, s14, 11')
    e('v_add_u32 v4, s18, v3')
    e('v_lshlrev_b32 v5, 9, v2')
    e('v_bfe_u32 v6, v1, 2, 2'); e('v_lshl_add_u32 v5, v6, 6, v5')
    e('v_bfe_u32 v6, v1, 4, 1'); e('v_lshl_add_u32 v5, v6, 5, v5')
    e('v_and_b32 v6, 3, v1'); e('v_lshl_add_u32 v5, v6, 3, v5')
    e('v_add_u32 v5, s18, v5')
    e('s_mov_b32 s30, 0xffff0000')
    k.stamp()
    AF = 61
    FA = 96
    DA = 64
    for u in range(2):
        k.wait(vm=f'x{u}')
        k.ds(f'ds_write_b128 v4, v[{X+4*u}:{X+4*u+3}] offset:{u*1024}', f'w{u}')
    k.stamp()
    for u in range(2):
        k.wait(lg=f'w{u}')
        for t in range(2):
            k.ds(f'ds_read_b64_tr_b16 v[{FA+4*u+2*t}:{FA+4*u+2*t+1}], v5 offset:{u*1024+t*256}', f'a{u}')
    ST = 104
    for u in range(2):
        s = ST + 4 * u; U = 112
        for i in range(4):
            e(f'v_lshlrev_b32 v{U+2*i}, 16, v{X+4*u+i}'); e(f'v_and_b32 v{U+2*i+1}, s30, v{X+4*u+i}')
        e(f'v_add_f32 v{s}, v{U}, v{U+2}'); e(f'v_add_f32 v{s+1}, v{U+1}, v{U+3}')
        e(f'v_mul_f32 v{s+2}, v{U}, v{U}'); e(f'v_mul_f32 v{s+3}, v{U+1}, v{U+1}')
        for i in range(2, 4):
            e(f'v_add_f32 v{s}, v{s}, v{U+2*i}'); e(f'v_add_f32 v{s+1}, v{s+1}, v{U+2*i+1}')
        for i in range(1, 4):
            e(f'v_fmac_f32 v{s+2}, v{U+2*i}, v{U+2*i}'); e(f'v_fmac_f32 v{s+3}, v{U+2*i+1}, v{U+2*i+1}')
        e(f'v_add_f32 v{s+2}, v{s+2}, v{s+3}')
        k.wait(lg=f'a{u}')
        e(f'v_mfma_f32_32x32x16_bf16 v[{DA+16*u}:{DA+16*u+15}], v[{FA+4*u}:{FA+4*u+3}], v[{BA}:{BA+3}], 0')
    chains = [ST, ST + 1, ST + 2, ST + 4, ST + 5, ST + 6]
    for mod in ('row_shr:1', 'row_shr:2', 'row_shr:4', 'row_shr:8', 'row_bcast:15 row_mask:0xa', 'row_bcast:31 row_mask:0xc'):
        for c in chains:
            m = mod if 'row_mask' in mod else mod + ' row_mask:0xf'
            e(f'v_add_f32_dpp v{c}, v{c}, v{c} {m} bank_mask:0xf' + (' bound_ctrl:0' if 'shr' in mod else ''))
    e('s_nop 0')
    for i, c in enumerate(chains): e(f'v_readlane_b32 s{32+i}, v{c}, 63')
    GP = 96
    for u in range(2):
        d = DA + 16 * u
        for r in range(16):
            e(f'v_mul_f32 v{112+r}, v{TC+r}, v{d+r}')
        for r in range(16):
            e(f'v_fmac_f32_dpp v{112+r}, v{d+r}, v{TS+r} {DPPX}')
        for p in range(8):
            e(f'v_cvt_pk_bf16_f32 v{GP+8*u+p}, v{112+2*p}, v{113+2*p}')
        k.nop(2)
        for ks in range(2):
            cin = '0' if ks == 0 else f'v[{d}:{d+15}]'
            e(f'v_mfma_f32_32x32x16_bf16 v[{d}:{d+15}], v[{AB+4*ks}:{AB+4*ks+3}], v[{GP+8*u+4*ks}:{GP+8*u+4*ks+3}], {cin}')
    for u in range(2):
        a, b, qv = 32 + 3 * u, 33 + 3 * u, 34 + 3 * u
        e(f'v_mov_b32 v12, s{a}')
        e(f'v_add_f32 v13, s{b}, v12')
        e(f'v_subrev_f32 v14, s{b}, v12')
        e('v_mul_f32 v13, 0x3b000000, v13')
        e(f'v_mov_b32 v15, s{qv}')
        e('v_mul_f32 v15, 0x3b000000, v15')
        e('v_fma_f32 v15, -v13, v13, v15')
        e('v_max_f32 v15, 0, v15')
        e('v_add_f32 v15, 0x3727c5ac, v15')
        e(f'v_rsq_f32 v{8+u}, v15')
        e(f'v_max_f32 v12, 0, v{SG}')
        e('v_mul_f32 v14, v14, v12')
        e(f'v_mul_f32 v{10+u}, v14, v{8+u}')
    e('v_cmp_gt_u32 vcc, 2, v1')
    e('s_lshl_b32 s18, s14, 2'); e('s_add_u32 s18, s18, 8192')
    e('v_add_u32 v4, s18, v3')
    for u in range(2):
        d = DA + 16 * u
        for r in range(8):
            e(f'v_fmac_f32_dpp v{d+r}, v{d+8+r}, v{SG} {DPPX}')
        for r in range(8):
            e(f'v_mul_f32 v{d+r}, v{d+r}, v{8+u}')
        e(f'v_cndmask_b32 v{d}, v{d}, v{10+u}, vcc')
    for r in range(8):
        e(f'v_cvt_pk_bf16_f32 v{112+r}, v{DA+r}, v{DA+16+r}')
        e(f'ds_write_b32 v4, v{112+r} offset:{r*1024}')
    e('v_bfe_u32 v6, v1, 1, 4')
    e('v_lshl_add_u32 v6, v2, 6, v6')
    e('s_lshl_b32 s18, s14, 4'); e('s_sub_u32 s18, s18, 1')
    e('v_add_u32 v6, s18, v6')
    e('v_add_u32 v7, 128, v6')
    e('v_and_b32 v6, 255, v6')
    e('s_lshr_b32 s18, s15, 4'); e('s_lshl_b32 s18, s18, 13'); e('s_lshl_b32 s19, s16, 8'); e('s_add_u32 s18, s18, s19')
    e('s_and_b32 s19, s15, 15'); e('s_lshl_b32 s19, s19, 4'); e('s_add_u32 s18, s18, s19')
    if CBUF: e(f's_add_u32 s18, s18, {CBUF}')
    e('v_and_b32 v12, 1, v1'); e('v_lshlrev_b32 v12, 10, v12'); e('v_add_u32 v12, s18, v12')
    for i in range(2):
        e(f'v_lshrrev_b32 v13, 2, v{6+i}'); e('v_lshl_add_u32 v13, v13, 15, v12')
        e(f'v_and_b32 v14, 3, v{6+i}'); e(f'v_lshl_add_u32 v{6+i}, v14, 11, v13')
    e('v_lshlrev_b32 v5, 4, v0')
    e('v_and_b32 v12, 7, v0'); e('v_lshrrev_b32 v13, 3, v0')
    e('v_lshlrev_b32 v8, 10, v12'); e('v_lshl_add_u32 v8, v13, 3, v8')
    e('v_add_u32 v9, 8, v8')
    e('v_add_u32 v10, 264, v8')
    e('v_lshlrev_b32 v14, 10, v12')
    e('v_cmp_eq_u32 vcc, 31, v13')
    e('v_lshlrev_b32 v11, 3, v13'); e('v_sub_u32 v11, 760, v11'); e('v_add_u32 v11, v11, v14')
    e('v_cndmask_b32 v10, v10, v14, vcc')
    e('s_lshl_b32 s18, s15, 15'); e('s_lshl_b32 s19, s16, 7'); e('s_add_u32 s18, s18, s19'); e(f's_add_u32 s18, s18, {HBUF}')
    e('v_lshlrev_b32 v15, 9, v13'); e('v_lshl_add_u32 v15, v12, 4, v15'); e('v_add_u32 v15, s18, v15')
    e('v_add_u32 v14, 0x4000, v15')
    e('s_waitcnt lgkmcnt(0)'); e('s_barrier')
    k.stamp()
    e('ds_read_b128 v[16:19], v5 offset:8192'); e('ds_read_b128 v[20:23], v5 offset:12288')
    for i in range(2):
        e(f'ds_read_b64 v[{24+8*i}:{25+8*i}], v8 offset:{256*i}')
        e(f'ds_read_b32 v{26+8*i}, v{9+i}')
        e(f'ds_read_b64 v[{30+8*i}:{31+8*i}], v11 offset:{256*(1-i)}')
    e('s_waitcnt lgkmcnt(7)')
    e('global_store_dwordx4 v6, v[16:19], s[12:13]')
    e('s_waitcnt lgkmcnt(6)')
    e('global_store_dwordx4 v7, v[20:23], s[12:13]')
    for i in range(2):
        e(f's_waitcnt lgkmcnt({3-3*i})')
        e(f'v_alignbit_b32 v{28+8*i}, v{25+8*i}, v{24+8*i}, 16')
        e(f'v_alignbit_b32 v{29+8*i}, v{26+8*i}, v{25+8*i}, 16')
        e(f'global_store_dwordx4 v15, v[{28+8*i}:{31+8*i}], s[12:13] offset:0' if i == 0 else f'global_store_dwordx4 v14, v[{28+8*i}:{31+8*i}], s[12:13]')
    k.stamp_flush(0)
    e('s_endpgm')
    if pre_gu:
        k.label(LPG); k.nst = 1; k.vm = []; k.lg = []
        e('s_sub_u32 s15, s2, 256')
        emit_prepack_gu(k, 's15')
        k.stamp_flush(0)
        e('s_endpgm')
    if pre_dn:
        k.label(LPD); k.nst = 1; k.vm = []; k.lg = []
        e(f's_sub_u32 s15, s2, {256+ngu}')
        emit_prepack_dn(k, 's15')
        k.stamp_flush(0)
    k.label(END)
    e('s_endpgm')
    return k
```

```python
import sys
sys.path.insert(0, 'dev')
from asmlib import *
from gen import *

def gen_k3():
    NSLOT = 5; CH = 28672; TBL = NSLOT * CH
    k = Kern('k3_kernel', 256, lds=TBL + 896, nvgpr=256, nagpr=40)
    e = k.e
    END = '.L_k3_end'
    e('s_cmp_ge_u32 s2, 256'); e(f's_cbranch_scc1 {END}')
    k.stamp()
    e(f's_load_dwordx2 s[12:13], s[0:1], {KA["ws"]}')
    e('v_and_b32 v9, 63, v0')
    e('v_lshrrev_b32 v10, 6, v0')
    e('v_lshlrev_b32 v1, 4, v9')
    e('v_readfirstlane_b32 s14, v10')
    e('s_and_b32 s15, s2, 7'); e('s_lshr_b32 s16, s2, 3')
    e('s_and_b32 s17, s15, 1'); e('s_lshl_b32 s17, s17, 3'); e('s_and_b32 s18, s16, 7'); e('s_add_u32 s17, s17, s18')
    e('s_lshr_b32 s18, s15, 1'); e('s_lshl_b32 s18, s18, 2'); e('s_lshr_b32 s19, s16, 3'); e('s_add_u32 s18, s18, s19')
    e('s_lshl_b32 s17, s17, 2'); e('s_add_u32 s17, s17, s14')
    e('s_lshl_b32 s19, s17, 15'); e(f's_add_u32 s19, s19, {HBUF}')
    e('s_mul_i32 s20, s18, 229376'); e(f's_add_u32 s20, s20, {WP3}')
    e('s_lshl_b32 s21, s14, 10')
    e('s_add_u32 s20, s20, s21')
    e('v_lshrrev_b32 v11, 5, v0'); e('v_min_u32 v11, 6, v11')
    e('v_and_b32 v12, 31, v0')
    e('v_lshrrev_b32 v13, 4, v12')
    e('s_movk_i32 s22, 1792')
    e('v_mul_u32_u24 v13, s22, v13')
    e('v_lshl_add_u32 v13, v11, 4, v13')
    e('v_and_b32 v14, 15, v12'); e('v_add_u32 v13, v13, v14')
    e('s_mul_i32 s22, s18, 112')
    e('v_add_u32 v13, s22, v13')
    e('v_lshlrev_b32 v13, 2, v13')
    e('v_bfe_u32 v14, v12, 2, 1')
    e('v_lshl_add_u32 v14, v11, 1, v14')
    e('v_lshlrev_b32 v14, 4, v14')
    e('v_and_b32 v15, 3, v12'); e('v_add_u32 v14, v14, v15')
    e('v_lshrrev_b32 v15, 3, v12'); e('v_lshl_add_u32 v14, v15, 2, v14')
    e('v_lshlrev_b32 v14, 2, v14')
    e(f'v_add_u32 v15, {TBL}, v14')
    e('v_mov_b32 v2, v1'); e('v_add_u32 v3, 57344, v1'); e('v_add_u32 v4, 114688, v1')
    e('s_waitcnt lgkmcnt(0)')
    e('s_add_u32 s4, s12, s19'); e('s_addc_u32 s5, s13, 0')
    e('s_add_u32 s6, s12, s20'); e('s_addc_u32 s7, s13, 0')
    e(f's_add_u32 s8, s12, {CSUMP}'); e('s_addc_u32 s9, s13, 0')
    TOK = 16; ACC = 144
    def issue_tok(c):
        for ks in range(4):
            kk = 4 * c + ks
            k.vmem(f'global_load_dwordx4 v[{TOK+4*kk}:{TOK+4*kk+3}], v1, s[4:5] offset:{ks*1024}', f'c{c}')
        add64(k, 4, 4096)
    def issue_dma(c, n0=0, n1=7):
        for n in range(n0, n1):
            e(f's_add_u32 m0, s21, {(c % NSLOT)*CH + n*4096}')
            e('s_nop 0')
            k.vmem('global_load_lds_dwordx4 v1, s[6:7]', f'c{c}')
            add64(k, 6, 4096)
    for c in range(NSLOT):
        issue_tok(c); issue_dma(c)
        if c == 1:
            for g in range(8):
                k.vmem(f'global_load_dword a{32+g}, v13, s[8:9]', 'cs')
                if g < 7: add64(k, 8, 14336)
    for i in range(112): e(f'v_mov_b32 v{ACC+i}, 0')
    for i in range(5, 9): e(f'v_mov_b32 v{i}, 0')
    e(f's_mov_b32 s30, {ONES}')
    PF = 7; R = 8
    NST = 224
    def rd(s):
        c, rem = divmod(s, 28)
        addr = (c % NSLOT) * CH + rem * 1024
        b, off = divmod(addr, 57344)
        a = 4 * (s % R)
        k.ds(f'ds_read_b128 a[{a}:{a+3}], v{2+b} offset:{off}', f'f{s}')
    k.stamp()
    k.wait(vm='c0'); e('s_barrier')
    k.stamp()
    for s in range(PF): rd(s)
    for s in range(NST):
        c, rem = divmod(s, 28); ks, j = divmod(rem, 7); kk = 4 * c + ks
        k.wait(lg=f'f{s}')
        a = 4 * (s % R)
        e(f'v_mfma_f32_32x32x16_bf16 v[{ACC+16*j}:{ACC+16*j+15}], a[{a}:{a+3}], v[{TOK+4*kk}:{TOK+4*kk+3}], v[{ACC+16*j}:{ACC+16*j+15}]')
        nxt = s + PF
        if nxt < NST:
            if nxt % 28 == 0:
                cn = nxt // 28
                if cn == 5:
                    k.wait(vm='cs')
                    for g in range(4): e(f'v_accvgpr_read_b32 v{9+g}, a{32+g}')
                    e('v_add_f32 v9, v9, v10'); e('v_add_f32 v11, v11, v12'); e('v_add_f32 v9, v9, v11')
                    for g in range(3): e(f'v_accvgpr_read_b32 v{10+g}, a{36+g}')
                    e('v_add_f32 v9, v9, v10'); e('v_accvgpr_read_b32 v10, a39'); e('v_add_f32 v11, v11, v12')
                    e('v_add_f32 v9, v9, v11'); e('v_add_f32 v9, v9, v10')
                    k.ds('ds_write_b32 v15, v9', 'tbl')
                    k.wait(lg='tbl')
                k.wait(vm=f'c{cn}')
                e('s_barrier')
                k.stamp()
                if 1 <= cn - 1 <= 3:
                    issue_tok(cn + 3); issue_dma(cn + 3)
            rd(nxt)
        dots = [j] if j < 6 else [6, 7]
        for d in dots:
            rg = TOK + 4 * kk + (d >> 1)
            if d & 1: e(f'v_dot2_f32_bf16 v{7 + ((d>>1)&1)}, v{rg}, v{rg}, v{7 + ((d>>1)&1)}')
            else: e(f'v_dot2_f32_bf16 v{5 + ((d>>1)&1)}, v{rg}, s30, v{5 + ((d>>1)&1)}')
    k.stamp()
    k.nop(3)
    e('v_add_f32 v5, v5, v6'); e('v_add_f32 v7, v7, v8')
    e('v_mov_b32 v6, v5'); e('v_mov_b32 v8, v7')
    k.nop(1)
    e('v_permlane32_swap_b32 v6, v5'); e('v_permlane32_swap_b32 v8, v7')
    k.nop(1)
    e('v_add_f32 v5, v5, v6'); e('v_add_f32 v7, v7, v8')
    e('v_mul_f32 v5, 0xbb000000, v5')
    e('v_mul_f32 v7, 0x3b000000, v7')
    e('v_fma_f32 v7, -v5, v5, v7')
    e('v_max_f32 v7, 0, v7')
    e('v_add_f32 v7, 0x3727c5ac, v7')
    e('v_rsq_f32 v8, v7')
    e('v_mov_b32 v10, v5')
    e('v_lshrrev_b32 v9, 5, v0'); e('v_and_b32 v9, 1, v9'); e('v_lshlrev_b32 v9, 6, v9')
    e(f'v_add_u32 v9, {TBL}, v9')
    e('v_mul_f32 v12, 0xbfb8aa3b, v8')
    e('s_mul_i32 s22, s17, 112'); e('s_mul_i32 s23, s18, 7'); e('s_add_u32 s22, s22, s23'); e('s_lshl_b32 s22, s22, 10')
    e(f's_add_u32 s22, s22, {HHBUF}')
    e('s_add_u32 s12, s12, s22'); e('s_addc_u32 s13, s13, 0')
    e('v_add_u32 v2, 4096, v1')
    CS = 16
    for j in range(7):
        for q in range(4):
            k.ds(f'ds_read_b128 v[{CS+16*j+4*q}:{CS+16*j+4*q+3}], v9 offset:{j*128+q*16}', f't{j}')
        if j == 2: k.wait(lg='t0')
        if j == 5: k.wait(lg='t2')
    O = 128
    for j in range(7):
        k.wait(lg=f't{j}')
        A = ACC + 16 * j; C = CS + 16 * j
        for p in range(4):
            e(f'v_pk_fma_f32 v[{A+2*p}:{A+2*p+1}], v[{C+2*p}:{C+2*p+1}], v[10:11], v[{A+2*p}:{A+2*p+1}] op_sel_hi:[1,0,1]')
        for p in range(4):
            e(f'v_pk_mul_f32 v[{A+2*p}:{A+2*p+1}], v[{A+2*p}:{A+2*p+1}], v[12:13] op_sel_hi:[1,0]')
        for r in range(8):
            e(f'v_exp_f32 v{A+r}, v{A+r}')
        for p in range(4):
            e(f'v_pk_fma_f32 v[{A+8+2*p}:{A+9+2*p}], v[{C+8+2*p}:{C+9+2*p}], v[10:11], v[{A+8+2*p}:{A+9+2*p}] op_sel_hi:[1,0,1]')
        for r in range(8):
            e(f'v_add_f32 v{A+r}, 1.0, v{A+r}')
        for r in range(8):
            e(f'v_rcp_f32 v{A+r}, v{A+r}')
        for p in range(4):
            e(f'v_pk_mul_f32 v[{A+8+2*p}:{A+9+2*p}], v[{A+8+2*p}:{A+9+2*p}], v[8:9] op_sel_hi:[1,0]')
        for p in range(4):
            e(f'v_pk_mul_f32 v[{A+2*p}:{A+2*p+1}], v[{A+2*p}:{A+2*p+1}], v[{A+8+2*p}:{A+9+2*p}]')
        o = O + 4 * (j & 1)
        for p in range(4):
            e(f'v_cvt_pk_bf16_f32 v{o+p}, v{A+2*p}, v{A+2*p+1}')
        e(f'global_store_dwordx4 v{1 if j < 4 else 2}, v[{o}:{o+3}], s[12:13] offset:{(j&3)*1024}')
    k.stamp_flush(2)
    k.label(END)
    e('s_endpgm')
    return k

def gen_k4():
    RK = 14
    k = Kern('k4_kernel', 256, lds=49152, nvgpr=128, nagpr=16 * RK)
    e = k.e
    END = '.L_k4_end'
    e('s_cmp_ge_u32 s2, 256'); e(f's_cbranch_scc1 {END}')
    k.stamp()
    e(f's_load_dwordx2 s[12:13], s[0:1], {KA["ws"]}')
    e(f's_load_dwordx2 s[26:27], s[0:1], {KA["out"]}')
    e('v_and_b32 v9, 63, v0')
    e('v_lshrrev_b32 v10, 6, v0')
    e('v_lshlrev_b32 v1, 4, v9')
    e('v_readfirstlane_b32 s14, v10')
    e('s_and_b32 s15, s2, 7'); e('s_lshr_b32 s16, s2, 3')
    e('s_and_b32 s17, s15, 1'); e('s_lshl_b32 s17, s17, 2'); e('s_and_b32 s18, s16, 3'); e('s_add_u32 s17, s17, s18')
    e('s_lshr_b32 s18, s15, 1'); e('s_lshl_b32 s18, s18, 3'); e('s_lshr_b32 s19, s16, 2'); e('s_add_u32 s18, s18, s19')
    e('s_and_b32 s24, s14, 1'); e('s_lshr_b32 s25, s14, 1')
    e('s_mul_i32 s19, s14, 28')
    e('s_mul_i32 s20, s17, 112'); e('s_add_u32 s20, s20, s19'); e('s_lshl_b32 s20, s20, 1')
    e('s_add_u32 s21, s20, s24'); e('s_xor_b32 s22, s24, 1'); e('s_add_u32 s22, s20, s22')
    e('s_lshl_b32 s21, s21, 10'); e('s_lshl_b32 s22, s22, 10')
    e(f's_add_u32 s21, s21, {WP4}'); e(f's_add_u32 s22, s22, {WP4}')
    e('s_lshl_b32 s23, s18, 1'); e('s_add_u32 s28, s23, s25')
    e('s_xor_b32 s29, s25, 1'); e('s_add_u32 s29, s23, s29')
    e('s_mul_i32 s30, s28, 112'); e('s_add_u32 s30, s30, s19'); e('s_lshl_b32 s30, s30, 10'); e(f's_add_u32 s30, s30, {HHBUF}')
    e('s_mul_i32 s31, s29, 112'); e('s_add_u32 s31, s31, s19'); e('s_lshl_b32 s31, s31, 10'); e(f's_add_u32 s31, s31, {HHBUF}')
    e('s_waitcnt lgkmcnt(0)')
    for (p, o) in ((4, 21), (6, 22), (8, 30), (10, 31)):
        e(f's_add_u32 s{p}, s12, s{o}'); e(f's_addc_u32 s{p+1}, s13, 0')
    def issue(s):
        a = 16 * (s % RK)
        k.vmem(f'global_load_dwordx4 a[{a}:{a+3}], v1, s[4:5] offset:{(s&1)*2048}', f'k{s}')
        k.vmem(f'global_load_dwordx4 a[{a+8}:{a+11}], v1, s[8:9] offset:{(s&3)*1024}', f'k{s}')
        k.vmem(f'global_load_dwordx4 a[{a+4}:{a+7}], v1, s[6:7] offset:{(s&1)*2048}', f'k{s}')
        k.vmem(f'global_load_dwordx4 a[{a+12}:{a+15}], v1, s[10:11] offset:{(s&3)*1024}', f'k{s}')
        if s & 1: add64(k, 4, 4096); add64(k, 6, 4096)
        if (s & 3) == 3: add64(k, 8, 4096); add64(k, 10, 4096)
    for s in range(RK): issue(s)
    RES = 96
    e('v_and_b32 v2, 31, v9'); e('v_lshrrev_b32 v3, 5, v9')
    e('s_lshl_b32 s20, s17, 4'); e('s_lshl_b32 s21, s24, 3'); e('s_add_u32 s20, s20, s21')
    e('v_lshl_add_u32 v4, v3, 2, s20')
    e('s_lshl_b32 s21, s28, 15'); e(f's_add_u32 s21, s21, {HBUF}')
    e('v_lshl_add_u32 v5, v2, 4, s21')
    LUP = '.L_k4_up'; LJ = '.L_k4_j'
    e('s_cmp_ge_u32 s17, 4'); e(f's_cbranch_scc1 {LUP}')
    e('v_add_u32 v6, 63, v4'); e('v_and_b32 v6, 63, v6')
    e('v_lshl_add_u32 v6, v6, 9, v5')
    e('v_lshl_add_u32 v7, v4, 9, v5')
    e(f'global_load_dword v{RES+1}, v6, s[12:13] offset:4')
    for a in range(4):
        e(f'global_load_dwordx2 v[{RES+2+2*a}:{RES+3+2*a}], v7, s[12:13] offset:{a*512}')
    e(f's_branch {LJ}')
    k.label(LUP)
    e('v_sub_u32 v6, 124, v4')
    e('v_lshl_add_u32 v7, v6, 9, v5')
    e(f'global_load_dword v{RES+1}, v7, s[12:13]')
    for a in range(4):
        e(f'global_load_dwordx2 v[{RES+2+2*a}:{RES+3+2*a}], v7, s[12:13] offset:{(3-a)*512+8}')
    k.label(LJ)
    for _ in range(5): k.vm.append('res')
    ACC = 32
    for i in range(64): e(f'v_mov_b32 v{ACC+i}, 0')
    k.stamp()
    for s in range(28):
        a = 16 * (s % RK)
        k.wait(vm=f'k{s}')
        if s in (0, 7, 14, 21): k.stamp()
        for ib in range(2):
            for im in range(2):
                d = ACC + 16 * (im + 2 * ib)
                e(f'v_mfma_f32_32x32x16_bf16 v[{d}:{d+15}], a[{a+4*im}:{a+4*im+3}], a[{a+8+4*ib}:{a+8+4*ib+3}], v[{d}:{d+15}]')
        if s + RK < 28: issue(s + RK)
    k.stamp()
    for t in range(1, 4):
        e(f's_xor_b32 s20, s14, {t}'); e('s_mul_i32 s20, s20, 12288'); e(f's_add_u32 s20, s20, {(t-1)*4096}')
        e(f'v_add_u32 v{10+t}, s20, v1')
    e('s_mul_i32 s20, s14, 12288'); e('v_add_u32 v10, s20, v1')
    k.nop(4)
    for t in range(1, 4):
        for rq in range(4):
            d = ACC + 16 * t + 4 * rq
            e(f'ds_write_b128 v{10+t}, v[{d}:{d+3}] offset:{rq*1024}')
    e('s_waitcnt lgkmcnt(0)'); e('s_barrier')
    k.stamp()
    for t in range(3):
        for rq in range(4):
            d = ACC + 16 * (t + 1) + 4 * rq
            k.ds(f'ds_read_b128 v[{d}:{d+3}], v10 offset:{t*4096+rq*1024}', f'r{t}')
    e('v_lshlrev_b32 v6, 16, v2'); e('s_lshl_b32 s20, s28, 10'); e('v_add_u32 v6, s20, v6')
    e('v_lshl_add_u32 v6, v4, 3, v6')
    k.wait(vm='res')
    LUP2 = '.L_k4_up2'; LJ2 = '.L_k4_j2'
    e('s_cmp_ge_u32 s17, 4'); e(f's_cbranch_scc1 {LUP2}')
    for p in range(8):
        e(f'v_alignbit_b32 v{16+p}, v{RES+2+p}, v{RES+1+p}, 16')
    e(f's_branch {LJ2}')
    k.label(LUP2)
    for p in range(8):
        e(f'v_mov_b32 v{16+p}, v{RES+2+p}')
    k.label(LJ2)
    e('s_mov_b32 s20, 0xffff0000')
    for p in range(8):
        e(f'v_lshlrev_b32 v{RES+2*p}, 16, v{16+p}')
        e(f'v_and_b32 v{RES+2*p+1}, s20, v{16+p}')
    for r in range(16):
        e(f'v_add_f32 v{ACC+r}, v{ACC+r}, v{RES+r}')
    for t in range(3):
        k.wait(lg=f'r{t}')
        for r in range(16):
            e(f'v_add_f32 v{ACC+r}, v{ACC+r}, v{ACC+16*(t+1)+r}')
    for p in range(8):
        e(f'v_cvt_pk_bf16_f32 v{16+p}, v{ACC+2*p}, v{ACC+2*p+1}')
    e('global_store_dwordx4 v6, v[16:19], s[26:27]')
    e('global_store_dwordx4 v6, v[20:23], s[26:27] offset:16')
    k.stamp_flush(3)
    k.label(END)
    e('s_endpgm')
    return k
```

```python
import sys
sys.path.insert(0, 'dev')
from asmlib import *
from gen import *

def gen_k3(KC=2, NS=6, PF=7, R=8):
    NSTG = 32 // KC
    WB = KC * 7 * 1024; TB = KC * 4 * 1024; SB = WB + TB
    TBL = NS * SB
    k = Kern('k3_kernel', 256, block=512, lds=TBL + 896, nvgpr=200)
    e = k.e
    END = '.L_k3_end'; LPROD = '.L_k3_prod'
    e('s_cmp_ge_u32 s2, 256'); e(f's_cbranch_scc1 {END}')
    k.stamp()
    e(f's_load_dwordx2 s[12:13], s[0:1], {KA["ws"]}')
    e('v_and_b32 v9, 63, v0')
    e('v_lshrrev_b32 v10, 6, v0')
    e('v_lshlrev_b32 v1, 4, v9')
    e('v_readfirstlane_b32 s14, v10')
    e('s_and_b32 s15, s2, 7'); e('s_lshr_b32 s16, s2, 3')
    e('s_and_b32 s17, s15, 1'); e('s_lshl_b32 s17, s17, 3'); e('s_and_b32 s18, s16, 7'); e('s_add_u32 s17, s17, s18')
    e('s_lshr_b32 s18, s15, 1'); e('s_lshl_b32 s18, s18, 2'); e('s_lshr_b32 s19, s16, 3'); e('s_add_u32 s18, s18, s19')
    e('s_and_b32 s24, s14, 3')
    e('s_lshl_b32 s17, s17, 2'); e('s_add_u32 s17, s17, s24')
    e('s_cmp_ge_u32 s14, 4'); e(f's_cbranch_scc1 {LPROD}')
    ACC = 16; WR = 128; TR = WR + 4 * R; NT = 4
    U = TR + 4 * NT
    nbase = (TBL + 57343) // 57344
    for b in range(nbase):
        e(f'v_add_u32 v{2+b}, {57344*b}, v1' if b else 'v_mov_b32 v2, v1')
    e('s_lshl_b32 s20, s24, 10')
    for b in range(nbase):
        e(f'v_add_u32 v{10+b}, s20, v{2+b}')
    for i in range(112): e(f'v_mov_b32 v{ACC+i}, 0')
    for i in range(5, 9): e(f'v_mov_b32 v{i}, 0')
    e('s_mov_b32 s30, 0xffff0000')
    NST = 224; SPS = 7 * KC
    def rd(s):
        c, rem = divmod(s, SPS)
        ks, j = divmod(rem, 7)
        if j == 0:
            kk = c * KC + ks
            addr = (c % NS) * SB + WB + ks * 4096
            b, off = divmod(addr, 57344)
            assert off + 4096 <= 65536
            t = TR + 4 * (kk % NT)
            k.ds(f'ds_read_b128 v[{t}:{t+3}], v{10+b} offset:{off}', f'f{s}')
        addr = (c % NS) * SB + rem * 1024
        b, off = divmod(addr, 57344)
        a = WR + 4 * (s % R)
        k.ds(f'ds_read_b128 v[{a}:{a+3}], v{2+b} offset:{off}', f'f{s}')
    k.stamp()
    e('s_barrier')
    k.stamp()
    for s in range(PF): rd(s)
    pend = []
    for s in range(NST):
        c, rem = divmod(s, SPS); ks, j = divmod(rem, 7); kk = c * KC + ks
        k.wait(lg=f'f{s}')
        a = WR + 4 * (s % R); t = TR + 4 * (kk % NT)
        e(f'v_mfma_f32_32x32x16_bf16 v[{ACC+16*j}:{ACC+16*j+15}], v[{a}:{a+3}], v[{t}:{t+3}], v[{ACC+16*j}:{ACC+16*j+15}]')
        nxt = s + PF
        if nxt < NST:
            if nxt % SPS == 0:
                e('s_barrier')
                if (nxt // SPS) % 4 == 0: k.stamp()
            rd(nxt)
        if j == 0:
            for i in range(4):
                lo = U + 2 * i; hi = lo + 1
                pend += [f'v_lshlrev_b32 v{lo}, 16, v{t+i}', f'v_and_b32 v{hi}, s30, v{t+i}']
            for i in range(4):
                lo = U + 2 * i; hi = lo + 1
                pend += [f'v_add_f32 v5, v5, v{lo}', f'v_add_f32 v6, v6, v{hi}', f'v_fmac_f32 v7, v{lo}, v{lo}', f'v_fmac_f32 v8, v{hi}, v{hi}']
        n = 4 if j < 3 else 3
        for _ in range(n):
            if pend: e(pend.pop(0))
    assert not pend
    k.stamp()
    e('v_add_f32 v5, v5, v6'); e('v_add_f32 v7, v7, v8')
    e('v_mov_b32 v6, v5'); e('v_mov_b32 v8, v7')
    k.nop(1)
    e('v_permlane32_swap_b32 v6, v5'); e('v_permlane32_swap_b32 v8, v7')
    k.nop(1)
    e('v_add_f32 v5, v5, v6'); e('v_add_f32 v7, v7, v8')
    e('v_mul_f32 v5, 0xbb000000, v5')
    e('v_mul_f32 v7, 0x3b000000, v7')
    e('v_fma_f32 v7, -v5, v5, v7')
    e('v_max_f32 v7, 0, v7')
    e('v_add_f32 v7, 0x3727c5ac, v7')
    e('v_rsq_f32 v8, v7')
    e('v_mov_b32 v10, v5')
    e('v_lshrrev_b32 v9, 5, v0'); e('v_and_b32 v9, 1, v9'); e('v_lshlrev_b32 v9, 6, v9')
    e(f'v_add_u32 v9, {TBL}, v9')
    e('v_mul_f32 v12, 0xbfb8aa3b, v8')
    e('s_mul_i32 s22, s17, 112'); e('s_mul_i32 s23, s18, 7'); e('s_add_u32 s22, s22, s23'); e('s_lshl_b32 s22, s22, 10')
    e(f's_add_u32 s22, s22, {HHBUF}')
    e('s_add_u32 s12, s12, s22'); e('s_addc_u32 s13, s13, 0')
    e('v_add_u32 v2, 4096, v1')
    CS = 128
    O = 176
    def rdt(j):
        for q in range(4):
            cc = CS + 16 * (j % 3) + 4 * q
            k.ds(f'ds_read_b128 v[{cc}:{cc+3}], v9 offset:{j*128+q*16}', f't{j}')
    rdt(0); rdt(1); rdt(2)
    for j in range(7):
        k.wait(lg=f't{j}')
        A = ACC + 16 * j; C = CS + 16 * (j % 3)
        for p in range(4):
            e(f'v_pk_fma_f32 v[{A+2*p}:{A+2*p+1}], v[{C+2*p}:{C+2*p+1}], v[10:11], v[{A+2*p}:{A+2*p+1}] op_sel_hi:[1,0,1]')
        for p in range(4):
            e(f'v_pk_fma_f32 v[{A+8+2*p}:{A+9+2*p}], v[{C+8+2*p}:{C+9+2*p}], v[10:11], v[{A+8+2*p}:{A+9+2*p}] op_sel_hi:[1,0,1]')
        if j + 3 < 7: rdt(j + 3)
        for p in range(4):
            e(f'v_pk_mul_f32 v[{A+2*p}:{A+2*p+1}], v[{A+2*p}:{A+2*p+1}], v[12:13] op_sel_hi:[1,0]')
        for r in range(8):
            e(f'v_exp_f32 v{A+r}, v{A+r}')
        for p in range(4):
            e(f'v_pk_mul_f32 v[{A+8+2*p}:{A+9+2*p}], v[{A+8+2*p}:{A+9+2*p}], v[8:9] op_sel_hi:[1,0]')
        for r in range(8):
            e(f'v_add_f32 v{A+r}, 1.0, v{A+r}')
        for r in range(8):
            e(f'v_rcp_f32 v{A+r}, v{A+r}')
        e('s_nop 0')
        for p in range(4):
            e(f'v_pk_mul_f32 v[{A+2*p}:{A+2*p+1}], v[{A+2*p}:{A+2*p+1}], v[{A+8+2*p}:{A+9+2*p}]')
        o = O + 4 * (j & 1)
        for p in range(4):
            e(f'v_cvt_pk_bf16_f32 v{o+p}, v{A+2*p}, v{A+2*p+1}')
        e(f'global_store_dwordx4 v{1 if j < 4 else 2}, v[{o}:{o+3}], s[12:13] offset:{(j&3)*1024} sc1')
    k.stamp_flush(2, 's24')
    e('s_endpgm')
    k.label(LPROD)
    k.vm = []; k.lg = []
    e('s_lshl_b32 s19, s17, 15'); e(f's_add_u32 s19, s19, {HBUF}')
    e('s_mul_i32 s20, s18, 229376'); e(f's_add_u32 s20, s20, {WP3}')
    e('s_lshl_b32 s21, s24, 10')
    e('s_add_u32 s20, s20, s21')
    e('s_waitcnt lgkmcnt(0)')
    e('s_add_u32 s4, s12, s19'); e('s_addc_u32 s5, s13, 0')
    e('s_add_u32 s6, s12, s20'); e('s_addc_u32 s7, s13, 0')
    e(f's_add_u32 s8, s12, {CSUMP}'); e('s_addc_u32 s9, s13, 0')
    NW = 7 * KC
    nfull = NW // 4; rem = NW % 4
    def issue_stage(c):
        base = (c % NS) * SB
        for ks in range(KC):
            e(f's_add_u32 m0, s21, {base + WB + ks*4096}')
            e('s_nop 0')
            k.vmem('global_load_lds_dwordx4 v1, s[4:5]', f'c{c}')
            add64(k, 4, 1024)
        for n in range(nfull):
            e(f's_add_u32 m0, s21, {base + n*4096}')
            e('s_nop 0')
            k.vmem('global_load_lds_dwordx4 v1, s[6:7]', f'c{c}')
            add64(k, 6, 4096)
        if rem:
            e(f's_add_u32 m0, s26, {base + nfull*4096}')
            e('s_nop 0')
            k.vmem('global_load_lds_dwordx4 v1, s[10:11]', f'c{c}')
            add64(k, 6, WB - nfull * 4096)
            add64(k, 10, WB)
    if rem:
        e(f's_min_u32 s25, s24, {rem-1}'); e('s_lshl_b32 s26, s25, 10')
        e('s_sub_u32 s25, s20, s21'); e('s_add_u32 s25, s25, s26'); e(f's_add_u32 s25, s25, {nfull*4096}')
        e('s_add_u32 s10, s12, s25'); e('s_addc_u32 s11, s13, 0')
    return k, e, issue_stage, NSTG, NS, TBL, END

def gen_k3_full(**kw):
    k, e, issue_stage, NSTG, NS, TBL, END = gen_k3(**kw)
    issued = 0
    for c in range(2):
        issue_stage(c); issued += 1
        if c == 1:
            e('v_subrev_u32 v10, 256, v0')
            e('v_lshrrev_b32 v11, 5, v10'); e('v_min_u32 v11, 6, v11')
            e('v_and_b32 v12, 31, v10')
            e('v_lshl_add_u32 v13, v11, 5, v12')
            e('s_mul_i32 s22, s18, 224')
            e('v_add_u32 v13, s22, v13')
            e('v_lshlrev_b32 v13, 2, v13')
            e('v_bfe_u32 v14, v12, 2, 1')
            e('v_lshl_add_u32 v14, v11, 1, v14')
            e('v_lshlrev_b32 v14, 4, v14')
            e('v_and_b32 v15, 3, v12'); e('v_add_u32 v14, v14, v15')
            e('v_lshrrev_b32 v15, 3, v12'); e('v_lshl_add_u32 v14, v15, 2, v14')
            e('v_lshlrev_b32 v14, 2, v14')
            e(f'v_add_u32 v15, {TBL}, v14')
            for g in range(16):
                k.vmem(f'global_load_dword v{16+g}, v13, s[8:9]', 'cs')
                if g < 15: add64(k, 8, 14336)
    for c in range(NSTG):
        k.wait(vm=f'c{c}')
        if c == 3:
            k.wait(vm='cs')
            for g in range(1, 16): e(f'v_add_f32 v16, v16, v{16+g}')
            e('ds_write_b32 v15, v16'); e('s_waitcnt lgkmcnt(0)')
        e('s_barrier')
        n = 0
        while issued < NSTG and issued <= c + NS - 2 and n < 2:
            issue_stage(issued); issued += 1; n += 1
    k.label(END)
    e('s_endpgm')
    return k
```

```python
import sys
sys.path.insert(0, 'dev')
from asmlib import *

CBUF = 0x000000
HBUF = 0x200000
WP3 = 0x400000
CSUMP = 0x780000
WP4 = 0x800000
HHBUF = 0xA00000
KA = dict(x=0, ws_re=8, ws_im=16, wd_re=24, wd_im=32, bx=40, wg=48, wu=56, wdn=64, out=72, dbg=80, ws=88)
ONES = 0x3F803F80

def add64(k, lo, val):
    k.e(f's_add_u32 s{lo}, s{lo}, {val}')
    k.e(f's_addc_u32 s{lo+1}, s{lo+1}, 0')

def gen_k1():
    k = Kern('k1_kernel', 256, lds=132096, nvgpr=160)
    e = k.e
    END = '.L_k1_end'
    e('s_cmp_ge_u32 s2, 256'); e(f's_cbranch_scc1 {END}')
    k.stamp()
    e(f's_load_dwordx2 s[20:21], s[0:1], {KA["x"]}')
    e(f's_load_dwordx4 s[8:11], s[0:1], {KA["wd_re"]}')
    e(f's_load_dwordx2 s[12:13], s[0:1], {KA["ws"]}')
    e('v_and_b32 v1, 63, v0')
    e('v_lshrrev_b32 v2, 6, v0')
    e('s_and_b32 s15, s2, 31')
    e('v_readfirstlane_b32 s14, v2')
    e('s_lshr_b32 s16, s2, 5')
    e('s_and_b32 s17, s15, 3')
    e('s_lshr_b32 s18, s15, 2')
    e('v_lshrrev_b32 v3, 4, v1')
    e('v_and_b32 v4, 15, v1')
    e('s_and_b32 s24, s14, 1'); e('s_lshr_b32 s25, s14, 1')
    e('s_lshl_b32 s26, s17, 19')
    e('s_lshl_b32 s27, s18, 3'); e('s_lshl_b32 s28, s24, 1'); e('s_add_u32 s27, s27, s28')
    e('s_lshl_b32 s28, s25, 2'); e('s_add_u32 s27, s27, s28'); e('s_lshl_b32 s27, s27, 10')
    e('s_add_u32 s26, s26, s27')
    e('s_lshl_b32 s27, s16, 5'); e('s_add_u32 s27, s27, 1'); e('s_lshl_b32 s28, s24, 4'); e('s_add_u32 s27, s27, s28')
    e('s_lshl_b32 s27, s27, 10')
    for a in range(4):
        e(f'v_add_u32 v5, {4*a}, v3')
        e('v_xor_b32 v5, v5, v4')
        e('v_lshlrev_b32 v5, 4, v5')
        e('v_lshl_add_u32 v6, v3, 16, v5')
        e(f's_add_u32 s28, s26, {(4*(a>>1))*65536 + (a&1)*1024}')
        e(f'v_add_u32 v{8+a}, s28, v6')
        e('v_lshl_add_u32 v6, v3, 10, v5')
        e(f's_add_u32 s28, s27, {4*a*1024}')
        e(f'v_add_u32 v{12+a}, s28, v6')
    e('s_lshl_b32 s29, s14, 12')
    e('s_waitcnt lgkmcnt(0)')
    e('s_cmp_eq_u32 s25, 0')
    e('s_cselect_b32 s22, s8, s10'); e('s_cselect_b32 s23, s9, s11')
    for kq in range(4):
        for a in range(4):
            e(f's_add_u32 m0, s29, {kq*16384 + a*1024}'); e('s_nop 0')
            k.vmem(f'global_load_lds_dwordx4 v{8+a}, s[20:21]', f'q{kq}')
            e(f's_add_u32 m0, s29, {65536 + kq*16384 + a*1024}'); e('s_nop 0')
            k.vmem(f'global_load_lds_dwordx4 v{12+a}, s[22:23]', f'q{kq}')
        if kq < 3:
            add64(k, 20, 256); add64(k, 22, 256)
    e('v_and_b32 v5, 31, v1')
    e('v_lshrrev_b32 v6, 5, v1')
    e('v_xor_b32 v7, v6, v4')
    e('v_lshlrev_b32 v7, 4, v7')
    e('v_lshl_add_u32 v7, v5, 8, v7')
    e('s_lshl_b32 s28, s24, 13')
    e('v_add_u32 v16, s28, v7')
    e('s_lshl_b32 s28, s25, 13'); e('s_add_u32 s28, s28, 65536')
    e('v_add_u32 v24, s28, v7')
    for ks in range(1, 8):
        e(f'v_xor_b32 v{16+ks}, {ks<<5}, v16')
        e(f'v_xor_b32 v{24+ks}, {ks<<5}, v24')
    ACC = 32
    ST = 48
    FR = 64
    for i in range(16): e(f'v_mov_b32 v{ACC+i}, 0')
    for i in range(4): e(f'v_mov_b32 v{ST+i}, 0')
    e(f's_mov_b32 s30, {ONES}')
    LSQ = '.L_k1_sq'; LJ = '.L_k1_join'
    k.stamp()
    e('s_cmp_eq_u32 s25, 1'); e(f's_cbranch_scc1 {LSQ}')
    vm_save = list(k.vm)
    for variant in range(2):
        k.vm = list(vm_save); k.lg = []
        if variant == 1: k.label(LSQ)
        for kq in range(4):
            k.wait(vm=f'q{kq}')
            e('s_barrier')
            if variant == 1: k.nst = 2 + kq
            k.stamp()
            for ks in range(8):
                k.ds(f'ds_read_b128 v[{FR+8*ks}:{FR+8*ks+3}], v{16+ks} offset:{kq*16384}', f'f{ks}')
                k.ds(f'ds_read_b128 v[{FR+8*ks+4}:{FR+8*ks+7}], v{24+ks} offset:{kq*16384}', f'f{ks}')
            for ks in range(8):
                k.wait(lg=f'f{ks}')
                a = FR + 8 * ks
                e(f'v_mfma_f32_32x32x16_bf16 v[{ACC}:{ACC+15}], v[{a}:{a+3}], v[{a+4}:{a+7}], v[{ACC}:{ACC+15}]')
                for i in range(4):
                    src = f'v{a+i}' if variant else 's30'
                    e(f'v_dot2_f32_bf16 v{ST+i}, v{a+i}, {src}, v{ST+i}')
        if variant == 0: e(f's_branch {LJ}')
    k.label(LJ)
    k.stamp()
    k.nop(3)
    e(f'v_add_f32 v{ST}, v{ST}, v{ST+1}'); e(f'v_add_f32 v{ST+2}, v{ST+2}, v{ST+3}')
    e(f'v_add_f32 v{ST}, v{ST}, v{ST+2}')
    e(f'v_mov_b32 v{ST+1}, v{ST}')
    k.nop(2)
    e(f'v_permlane32_swap_b32 v{ST+1}, v{ST}')
    k.nop(1)
    e(f'v_add_f32 v{ST}, v{ST}, v{ST+1}')
    e('s_lshl_b32 s28, s25, 8'); e('s_lshl_b32 s31, s24, 7'); e('s_add_u32 s28, s28, s31'); e('s_add_u32 s28, s28, 131072')
    e('v_lshlrev_b32 v52, 2, v5')
    e('v_add_u32 v53, s28, v52')
    e(f'ds_write_b32 v53, v{ST}')
    e('s_waitcnt lgkmcnt(0)'); e('s_barrier')
    e('s_add_u32 s28, s31, 131072')
    e('v_add_u32 v53, s28, v52')
    e('ds_read_b32 v54, v53'); e('ds_read_b32 v55, v53 offset:256')
    e('s_waitcnt lgkmcnt(0)')
    e('v_mul_f32 v54, 0x3b000000, v54')
    e('v_mul_f32 v55, 0x3b000000, v55')
    e('v_fma_f32 v55, -v54, v54, v55')
    e('v_max_f32 v55, 0, v55')
    e('v_add_f32 v55, 0x3727c5ac, v55')
    e('v_rsq_f32 v55, v55')
    e('s_lshl_b32 s28, s14, 7'); e('s_add_u32 s28, s28, 131584')
    e('v_add_u32 v53, s28, v52')
    e('ds_write_b32 v53, v55')
    e('v_lshlrev_b32 v56, 4, v6')
    e('v_add_u32 v53, s28, v56')
    e('s_waitcnt lgkmcnt(0)')
    for rq in range(4):
        e(f'ds_read_b128 v[{FR+4*rq}:{FR+4*rq+3}], v53 offset:{rq*32}')
    e('v_lshrrev_b32 v57, 2, v5'); e('v_lshlrev_b32 v57, 15, v57')
    e('v_and_b32 v58, 3, v5'); e('v_lshl_add_u32 v57, v58, 11, v57')
    e('v_add_u32 v57, v57, v56')
    e('s_lshl_b32 s28, s16, 18')
    e('s_lshr_b32 s31, s18, 1'); e('s_lshl_b32 s31, s31, 13'); e('s_add_u32 s28, s28, s31')
    e('s_lshl_b32 s31, s25, 10'); e('s_add_u32 s28, s28, s31')
    e('s_lshl_b32 s31, s17, 8'); e('s_add_u32 s28, s28, s31')
    e('s_and_b32 s31, s18, 1'); e('s_lshl_b32 s31, s31, 7'); e('s_add_u32 s28, s28, s31')
    e('s_lshl_b32 s31, s24, 6'); e('s_add_u32 s28, s28, s31')
    if CBUF: e(f's_add_u32 s28, s28, {CBUF}')
    e('v_add_u32 v57, s28, v57')
    e('s_waitcnt lgkmcnt(0)')
    for r in range(16):
        e(f'v_mul_f32 v{ACC+r}, v{ACC+r}, v{FR+r}')
    for p in range(8):
        e(f'v_cvt_pk_bf16_f32 v{FR+16+p}, v{ACC+2*p}, v{ACC+2*p+1}')
    e(f'global_store_dwordx4 v57, v[{FR+16}:{FR+19}], s[12:13]')
    e(f'global_store_dwordx4 v57, v[{FR+20}:{FR+23}], s[12:13] offset:32')
    k.stamp_flush(0)
    k.label(END)
    e('s_endpgm')
    return k

def f2u(x):
    import struct
    return '0x%08x' % struct.unpack('<I', struct.pack('<f', x))[0]

K2WT = ''
def gen_k2(prepack=False, pre_dn=True):
    NPG, NPD = (0, 56) if pre_dn else (0, 0)
    k = Kern('k2_kernel', 256 + NPG + NPD, lds=32768 if pre_dn else 16384, nvgpr=180)
    e = k.e
    END = '.L_k2_end'; LPG = '.L_k2_pg'; LPD = '.L_k2_pd'
    e(f's_cmp_ge_u32 s2, {256+NPG+NPD}'); e(f's_cbranch_scc1 {END}')
    k.stamp()
    e(f's_load_dwordx2 s[12:13], s[0:1], {KA["ws"]}')
    e('v_and_b32 v1, 63, v0')
    e('v_lshrrev_b32 v2, 6, v0')
    e('s_nop 0')
    e('v_readfirstlane_b32 s14, v2')
    if pre_dn:
        e(f's_cmp_ge_u32 s2, 256'); e(f's_cbranch_scc1 {LPD}')
    e('s_and_b32 s15, s2, 63')
    e('s_lshr_b32 s16, s2, 6')
    e('v_and_b32 v3, 15, v1')
    e('v_lshrrev_b32 v4, 4, v1')
    e('v_lshlrev_b32 v5, 4, v1')
    e('s_lshl_b32 s17, s15, 15'); e('s_lshl_b32 s18, s14, 13'); e('s_add_u32 s17, s17, s18')
    if CBUF: e(f's_add_u32 s17, s17, {CBUF}')
    e('v_add_u32 v6, s17, v5')
    e('v_add_u32 v7, 4096, v6')
    e('s_and_b32 s24, s14, 1'); e('s_lshr_b32 s25, s14, 1')
    e('s_lshl_b32 s19, s24, 5'); e('s_add_u32 s19, s19, s25')
    e('v_lshl_add_u32 v8, v3, 1, s19')
    e('s_lshl_b32 s19, s16, 3')
    e('v_lshl_add_u32 v9, v4, 1, s19')
    e('s_lshl_b32 s22, s25, 5')
    e('v_add_u32 v10, s22, v9')
    e('v_lshlrev_b32 v10, 15, v10')
    e('v_lshl_add_u32 v10, v3, 4, v10')
    e('s_lshl_b32 s22, s15, 9'); e('s_lshl_b32 s23, s24, 8'); e('s_add_u32 s22, s22, s23'); e(f's_add_u32 s22, s22, {HBUF}')
    e('v_add_u32 v10, s22, v10')
    e('v_add_u32 v11, 0x8000, v10')
    A1 = 32
    XL = 64
    e('s_waitcnt lgkmcnt(0)')
    for f in range(8):
        k.vmem(f'global_load_dwordx4 v[{A1+4*f}:{A1+4*f+3}], v{6 + (f>>2)}, s[12:13] offset:{(f&3)*1024}', f'a{f}')
    for u in range(2):
        k.vmem(f'global_load_dwordx4 v[{XL+4*u}:{XL+4*u+3}], v{10+u}, s[12:13]', 'x')
    k.stamp()
    B1 = 80
    TW = 84
    B2 = 100
    T = 16
    e('v_lshrrev_b32 v13, 1, v3'); e('v_add_u32 v13, s19, v13')
    e('v_and_b32 v14, 1, v3')
    e('v_cvt_f32_u32 v15, v13')
    e(f'v_cvt_f32_u32 v{T}, v14')
    e(f'v_cvt_f32_u32 v{T+1}, v4')
    e(f'v_mul_f32 v{T+2}, {f2u(1/32)}, v15')
    e(f'v_mul_f32 v{T+3}, 0x41000000, v{T+1}')
    e(f'v_mul_f32 v{T+3}, v{T+3}, v{T+2}')
    e(f'v_mul_f32 v{T+4}, {f2u(0.25)}, v{T}')
    e(f'v_add_f32 v{T+3}, v{T+3}, v{T+4}')
    for jj in range(8):
        e(f'v_cos_f32 v{T+8+jj}, v{T+3}')
        if jj < 7: e(f'v_add_f32 v{T+3}, v{T+3}, v{T+2}')
    e('s_nop 0')
    for p in range(4):
        e(f'v_cvt_pk_bf16_f32 v{B1+p}, v{T+8+2*p}, v{T+9+2*p}')
    e(f'v_mul_f32 v{T+2}, {f2u(1/2048)}, v15')
    e('s_lshl_b32 s22, s14, 4')
    e(f'v_lshl_add_u32 v{T+3}, v4, 2, s22')
    e(f'v_cvt_f32_u32 v{T+3}, v{T+3}')
    e(f'v_mul_f32 v{T+3}, v{T+3}, v{T+2}')
    e(f'v_sub_f32 v{T+5}, v{T+3}, v{T+4}')
    e(f'v_add_f32 v{T+6}, v{T+3}, v{T+4}')
    e(f'v_subrev_f32 v{T+6}, {f2u(0.25)}, v{T+6}')
    e(f'v_fma_f32 v{T+7}, v{T}, -2.0, 1.0')
    for r in range(4):
        e(f'v_cos_f32 v{TW+r}, v{T+5}')
        e(f'v_cos_f32 v{TW+4+r}, v{T+6}')
        if r < 3:
            e(f'v_add_f32 v{T+5}, v{T+5}, v{T+2}'); e(f'v_add_f32 v{T+6}, v{T+6}, v{T+2}')
    e('s_nop 0')
    for r in range(8):
        e(f'v_mul_f32 v{TW+8+r}, v{TW+r}, v{T+7}')
    e(f'v_cvt_f32_u32 v{T+2}, v8')
    e(f'v_mul_f32 v{T+2}, {f2u(1/64)}, v{T+2}')
    e(f'v_mul_f32 v{T+3}, 4.0, v{T+1}')
    e(f'v_mul_f32 v{T+3}, v{T+3}, v{T+2}')
    e(f'v_mul_f32 v{T+4}, {f2u(13.0)}, v{T+2}')
    for ks in range(4):
        for r in range(4):
            e(f'v_cos_f32 v{T+8}, v{T+3}')
            e(f'v_sin_f32 v{T+9}, v{T+3}')
            e(f'v_add_f32 v{T+3}, v{T+3}, v{T+2 if r < 3 else T+4}')
            e(f'v_cvt_pk_bf16_f32 v{B2+4*ks+r}, v{T+8}, v{T+9}')
    k.stamp()
    D1 = 116
    for f in range(8):
        k.wait(vm=f'a{f}')
        e(f'v_mfma_f32_16x16x32_bf16 v[{D1+4*f}:{D1+4*f+3}], v[{A1+4*f}:{A1+4*f+3}], v[{B1}:{B1+3}], 0')
    DPP = 'quad_perm:[1,0,3,2] row_mask:0xf bank_mask:0xf'
    e('s_lshl_b32 s22, s14, 10')
    e('v_add_u32 v15, s22, v5')
    k.stamp()
    k.nop(6)
    for ei in range(4):
        a = D1 + 8 * ei; b = a + 4
        for r in range(4):
            X = T + 2 * r; Y = X + 1
            e(f'v_subrev_f32_dpp v{X}, v{b+r}, v{a+r} {DPP}')
            e(f'v_add_f32_dpp v{Y}, v{a+r}, v{b+r} {DPP}')
        for r in range(4):
            X = T + 2 * r; Y = X + 1
            e(f'v_mul_f32 v{T+8+2*r}, v{TW+r}, v{X}')
            e(f'v_mul_f32 v{T+9+2*r}, v{TW+8+r}, v{Y}')
        for r in range(4):
            X = T + 2 * r; Y = X + 1
            e(f'v_fmac_f32 v{T+8+2*r}, v{TW+4+r}, v{Y}')
            e(f'v_fma_f32 v{T+9+2*r}, -v{TW+12+r}, v{X}, v{T+9+2*r}')
        for r in range(4):
            e(f'v_cvt_pk_bf16_f32 v{A1+4*ei+r}, v{T+8+2*r}, v{T+9+2*r}')
        e(f'ds_write_b128 v15, v[{A1+4*ei}:{A1+4*ei+3}] offset:{ei*4096}')
    e('s_waitcnt lgkmcnt(0)'); e('s_barrier')
    k.stamp()
    A2 = 116
    D2 = 48
    for half in range(2):
        for ei in range(2 * half, 2 * half + 2):
            for ks in range(4):
                rr = A2 + 16 * (ei & 1) + 4 * ks
                k.ds(f'ds_read_b128 v[{rr}:{rr+3}], v5 offset:{(ei*4+ks)*1024}', f'g{ei}{ks}')
        for ei in range(2 * half, 2 * half + 2):
            for ks in range(4):
                rr = A2 + 16 * (ei & 1) + 4 * ks
                k.wait(lg=f'g{ei}{ks}')
                cin = '0' if ks == 0 else f'v[{D2+4*ei}:{D2+4*ei+3}]'
                e(f'v_mfma_f32_16x16x32_bf16 v[{D2+4*ei}:{D2+4*ei+3}], v[{rr}:{rr+3}], v[{B2+4*ks}:{B2+4*ks+3}], {cin}')
        A2 += 32
    k.stamp()
    k.wait(vm='x')
    k.stamp()
    LN63 = '.L_k2_n63'
    e('s_cmp_lg_u32 s15, 63'); e(f's_cbranch_scc1 {LN63}')
    k.nop(8)
    for u in range(2):
        e(f'v_mov_b32 v{D2+12+2*u}, 0')
    k.label(LN63)
    k.nop(8)
    e('s_mov_b32 s22, 0xffff0000')
    for u in range(2):
        xl = XL + 4 * u
        srcs = [('lo', xl), ('hi', xl), ('lo', xl + 1), ('hi', xl + 1), ('lo', xl + 2), ('hi', xl + 2), ('lo', xl + 3), ('hi', xl + 3)]
        for i, (part, rg) in enumerate(srcs):
            if part == 'hi': e(f'v_and_b32 v{T+i}, s22, v{rg}')
            else: e(f'v_lshlrev_b32 v{T+i}, 16, v{rg}')
        for i in range(8):
            y = D2 + 4 * i + 2 * u if i < 4 else D2 + 4 * (7 - i) + 2 * u + 1
            e(f'v_add_f32 v{T+i}, v{T+i}, v{y}')
        o = T + 8 + 4 * u
        for p in range(4):
            e(f'v_cvt_pk_bf16_f32 v{o+p}, v{T+2*p}, v{T+2*p+1}')
        e(f'global_store_dwordx4 v{10+u}, v[{o}:{o+3}], s[12:13]' + K2WT)
    k.stamp_flush(1)
    e('s_endpgm')
    k.nst = 1
    if not prepack:
        if pre_dn:
            import gen1b
            k.label(LPD); k.vm = []; k.lg = []
            e('s_sub_u32 s15, s2, 256')
            gen1b.emit_prepack_dn(k, 's15')
            k.stamp_flush(1)
        k.label(END)
        e('s_endpgm')
        return k

    k.label(LPG)
    k.vm = []; k.lg = []
    e(f's_load_dwordx4 s[4:7], s[0:1], {KA["wg"]}')
    e('s_sub_u32 s15, s2, 256')
    e('s_cmp_ge_u32 s15, 56')
    e('s_cselect_b32 s16, 1, 0')
    e('s_mul_i32 s17, s16, 56'); e('s_sub_u32 s15, s15, s17')
    e('s_lshr_b32 s17, s15, 3')
    e('s_and_b32 s18, s15, 7')
    e('v_and_b32 v3, 31, v1')
    e('v_lshrrev_b32 v4, 5, v1')
    e('s_lshl_b32 s19, s18, 3'); e('s_lshl_b32 s20, s14, 1'); e('s_add_u32 s19, s19, s20')
    e('v_add_u32 v5, s19, v4')
    e('s_lshl_b32 s20, s17, 8')
    e('v_lshl_add_u32 v6, v3, 3, s20')
    e('v_lshlrev_b32 v7, 1, v6')
    e('v_lshlrev_b32 v8, 2, v5')
    e('s_movk_i32 s21, 3584')
    for i in range(4):
        e(f'v_add_u32 v9, {1+i}, v8'); e('v_and_b32 v9, 255, v9')
        e(f'v_mad_u32_u24 v{16+i}, v9, s21, v7')
        e(f'v_sub_u32 v9, {508+i}, v8')
        e(f'v_mad_u32_u24 v{20+i}, v9, s21, v7')
    e('s_waitcnt lgkmcnt(0)')
    e('s_cmp_eq_u32 s16, 0')
    e('s_cselect_b32 s4, s4, s6'); e('s_cselect_b32 s5, s5, s7')
    IN = 32
    for i in range(8):
        e(f'global_load_dwordx4 v[{IN+4*i}:{IN+4*i+3}], v{16+i}, s[4:5]')
    e('s_movk_i32 s21, 2341')
    e('v_mul_u32_u24 v9, s21, v6'); e('v_lshrrev_b32 v9, 18, v9')
    e('s_movk_i32 s21, 112')
    e('v_mul_u32_u24 v10, s21, v9'); e('v_sub_u32 v10, v6, v10')
    e('v_lshrrev_b32 v11, 4, v10')
    e('v_lshrrev_b32 v12, 1, v5')
    e('v_lshl_add_u32 v12, v9, 5, v12')
    e('v_mul_u32_u24 v12, 7, v12'); e('v_add_u32 v12, v12, v11')
    e('v_lshlrev_b32 v12, 10, v12')
    e('v_lshl_add_u32 v12, v4, 9, v12')
    e('v_and_b32 v10, 15, v10')
    e('v_lshl_add_u32 v12, v10, 4, v12')
    e('s_lshl_b32 s21, s16, 8'); e(f's_add_u32 s21, s21, {WP3}')
    e('v_add_u32 v12, s21, v12')
    e('s_mov_b32 s22, 0x05040100'); e('s_mov_b32 s23, 0x07060302'); e(f's_mov_b32 s24, {ONES}')
    OUT = 64; SUM = 96
    k.stamp()
    e('s_waitcnt vmcnt(0)')
    k.stamp()
    for jf in range(8):
        for p in range(4):
            e(f'v_perm_b32 v{OUT+4*jf+p}, v{IN+4*(2*p+1)+(jf>>1)}, v{IN+4*(2*p)+(jf>>1)}, s{22+(jf&1)}')
        e(f'global_store_dwordx4 v12, v[{OUT+4*jf}:{OUT+4*jf+3}], s[12:13] offset:{jf*16}')
    for jf in range(8):
        e(f'v_mov_b32 v{SUM+jf}, 0')
    for p in range(4):
        for jf in range(8):
            e(f'v_dot2_f32_bf16 v{SUM+jf}, v{OUT+4*jf+p}, s24, v{SUM+jf}')
    e('s_lshl_b32 s21, s14, 11')
    e('v_lshlrev_b32 v13, 10, v4'); e('v_lshl_add_u32 v13, v3, 5, v13'); e('v_add_u32 v13, s21, v13')
    k.nop(2)
    e(f'ds_write_b128 v13, v[{SUM}:{SUM+3}]'); e(f'ds_write_b128 v13, v[{SUM+4}:{SUM+7}] offset:16')
    e('s_waitcnt lgkmcnt(0)'); e('s_barrier')
    e('v_lshlrev_b32 v13, 2, v0')
    for g in range(8):
        e(f'ds_read_b32 v{IN+g}, v13 offset:{g*1024}')
    e('s_lshl_b32 s21, s18, 1'); e('s_add_u32 s21, s21, s16'); e('s_mul_i32 s21, s21, 1792')
    e('s_add_u32 s21, s21, s20'); e('s_lshl_b32 s21, s21, 2'); e(f's_add_u32 s21, s21, {CSUMP}')
    e('v_add_u32 v13, s21, v13')
    e('s_waitcnt lgkmcnt(0)')
    for g in range(1, 8):
        e(f'v_add_f32 v{IN}, v{IN}, v{IN+g}')
    e(f'global_store_dword v13, v{IN}, s[12:13]')
    k.stamp_flush(1)
    e('s_endpgm')
    k.nst = 1

    k.label(LPD)
    e(f's_load_dwordx2 s[4:5], s[0:1], {KA["wdn"]}')
    e(f's_sub_u32 s15, s2, {256+NPG}')
    e('s_lshl_b32 s15, s15, 2'); e('s_add_u32 s15, s15, s14')
    e('s_lshr_b32 s16, s15, 1')
    e('s_and_b32 s17, s15, 1')
    e('s_lshl_b32 s18, s16, 4'); e('s_lshl_b32 s19, s17, 2'); e('s_add_u32 s18, s18, s19')
    e('s_lshl_b32 s18, s18, 10')
    e('v_lshlrev_b32 v3, 4, v1')
    e('v_add_u32 v3, s18, v3')
    e('v_add_u32 v4, 8192, v3')
    e('s_waitcnt lgkmcnt(0)')
    for i in range(8):
        e(f'global_load_dwordx4 v[{IN+4*i}:{IN+4*i+3}], v{3+(i>>2)}, s[4:5] offset:{(i&3)*1024}')
    e('v_lshrrev_b32 v5, 3, v1')
    e('s_movk_i32 s21, 112')
    e('v_mul_u32_u24 v5, s21, v5'); e('v_add_u32 v5, s16, v5')
    e('v_bfe_u32 v6, v1, 2, 1')
    e('v_lshl_add_u32 v5, v5, 1, v6')
    e('v_lshlrev_b32 v5, 10, v5')
    e('v_bfe_u32 v6, v1, 1, 1')
    e('v_lshl_add_u32 v5, v6, 6, v5')
    e('v_and_b32 v6, 1, v1')
    e('v_lshl_add_u32 v5, v6, 8, v5')
    e('s_lshl_b32 s21, s17, 9'); e(f's_add_u32 s21, s21, {WP4}')
    e('v_add_u32 v5, s21, v5')
    e('s_mov_b32 s22, 0x05040100'); e('s_mov_b32 s23, 0x07060302')
    k.stamp()
    e('s_waitcnt vmcnt(0)')
    k.stamp()
    for jc in range(8):
        for p in range(4):
            e(f'v_perm_b32 v{OUT+4*jc+p}, v{IN+4*(2*p+1)+(jc>>1)}, v{IN+4*(2*p)+(jc>>1)}, s{22+(jc&1)}')
        e(f'global_store_dwordx4 v5, v[{OUT+4*jc}:{OUT+4*jc+3}], s[12:13] offset:{(jc&3)*16 + (jc>>2)*128}')
    k.stamp_flush(1)
    k.label(END)
    e('s_endpgm')
    return k

HEADER = open('sequential_preLN__spectral_fnet__glu_gated_glu__prompt.s.ref').read().split('; Override')[0]

if __name__ == '__main__':
    assert all(((f * 2341) >> 18) == f // 112 for f in range(0, 1792, 8))
    import gen1b
    ks = [gen1b.gen_k1(pre_dn=False), gen_k2()]
    try:
        from gen34 import gen_k4
        from gen3b import gen_k3_full
        ks += [gen_k3_full(), gen_k4()]
    except ImportError:
        pass
    for k in ks:
        for p in lint(k): print('LINT', p)
    out = sys.argv[1] if len(sys.argv) > 1 else 'out.s'
    open(out, 'w').write(assemble_file(ks, HEADER))
    print('wrote', out)
```

```python
import sys
sys.path.insert(0, 'dev')
from asmlib import *
from gen import *

NPG, NPD = 112, 56
DPPX = 'quad_perm:[1,0,3,2] row_mask:0xf bank_mask:0xf'

def emit_prepack_gu(k, pid_sgpr):
    e = k.e
    e(f's_load_dwordx4 s[4:7], s[0:1], {KA["wg"]}')
    e(f's_mul_i32 s16, {pid_sgpr}, 9363'); e('s_lshr_b32 s16, s16, 16')
    e('s_mul_i32 s17, s16, 7'); e(f's_sub_u32 s17, {pid_sgpr}, s17')
    e('s_lshr_b32 s18, s14, 1')
    e('s_and_b32 s19, s14, 1')
    e('v_lshrrev_b32 v2, 5, v1')
    e('v_and_b32 v3, 31, v1')
    e('v_lshlrev_b32 v3, 4, v3')
    e('s_lshl_b32 s20, s17, 9')
    e('v_add_u32 v3, s20, v3')
    e('s_lshl_b32 s21, s16, 2'); e('s_lshl_b32 s22, s19, 1'); e('s_add_u32 s21, s21, s22')
    e('s_lshl_b32 s21, s21, 2')
    e('s_movk_i32 s23, 3584')
    for n in range(8):
        g = n >> 2; i0 = (2 * n) & 7
        if i0 < 4:
            e(f's_add_u32 s24, s21, {4*g + 1 + i0}')
            e('v_add_u32 v4, s24, v2'); e('v_and_b32 v4, 255, v4')
        else:
            e(f's_sub_u32 s24, {508 - 4*g + i0 - 4}, s21')
            e('v_add_u32 v4, s24, v2')
        e(f'v_mad_u32_u24 v{8+n}, v4, s23, v3')
    e('s_lshl_b32 s25, s14, 13')
    e('s_waitcnt lgkmcnt(0)')
    e('s_cmp_eq_u32 s18, 0')
    e('s_cselect_b32 s4, s4, s6'); e('s_cselect_b32 s5, s5, s7')
    for n in range(8):
        e(f's_add_u32 m0, s25, {n*1024}'); e('s_nop 0')
        e(f'global_load_lds_dwordx4 v{8+n}, s[4:5]')
    e('v_bfe_u32 v4, v1, 4, 1'); e('v_lshlrev_b32 v4, 14, v4')
    e('v_lshl_add_u32 v4, v2, 12, v4')
    e('v_bfe_u32 v5, v1, 2, 2'); e('v_lshl_add_u32 v4, v5, 9, v4')
    e('v_and_b32 v5, 3, v1'); e('v_lshl_add_u32 v4, v5, 3, v4')
    e('s_lshl_b32 s24, s14, 7')
    e('v_add_u32 v4, s24, v4')
    e('v_lshlrev_b32 v6, 4, v1')
    e(f's_mov_b32 s30, {ONES}')
    e('s_waitcnt vmcnt(0)'); e('s_barrier')
    D = 16
    for jl in range(4):
        for kkl in range(2):
            d = D + 4 * (2 * jl + kkl)
            for t in range(2):
                e(f'ds_read_b64_tr_b16 v[{d+2*t}:{d+2*t+1}], v4 offset:{kkl*8192 + t*2048 + jl*32}')
    for jl in range(4):
        e('s_lshl_b32 s24, s17, 4'); e('s_lshl_b32 s26, s14, 2'); e('s_add_u32 s24, s24, s26'); e(f's_add_u32 s24, s24, {jl}')
        e('s_mul_i32 s26, s24, 9363'); e('s_lshr_b32 s26, s26, 16')
        e('s_mul_i32 s27, s26, 7'); e('s_sub_u32 s27, s24, s27')
        e('s_lshl_b32 s26, s26, 5'); e('s_lshl_b32 s28, s16, 1'); e('s_add_u32 s26, s26, s28')
        e('s_mul_i32 s26, s26, 7'); e('s_add_u32 s26, s26, s27'); e('s_lshl_b32 s26, s26, 10')
        e(f's_add_u32 s26, s26, {WP3}')
        e('s_add_u32 s8, s12, s26'); e('s_addc_u32 s9, s13, 0')
        e(f's_add_u32 s10, s8, 7168'); e('s_addc_u32 s11, s9, 0')
        e(f's_waitcnt lgkmcnt({12 - 4*jl})')
        d = D + 8 * jl
        e(f'global_store_dwordx4 v6, v[{d}:{d+3}], s[8:9]' + WT)
        e(f'global_store_dwordx4 v6, v[{d+4}:{d+7}], s[10:11]' + WT)
        e(f'v_mov_b32 v{48+jl}, 0')
        for p in range(8):
            e(f'v_dot2_f32_bf16 v{48+jl}, v{d+p}, s30, v{48+jl}')
    k.nop(3)
    for jl in range(4): e(f'v_mov_b32 v{52+jl}, v{48+jl}')
    k.nop(1)
    for jl in range(4): e(f'v_permlane32_swap_b32 v{52+jl}, v{48+jl}')
    k.nop(1)
    for jl in range(4): e(f'v_add_f32 v{48+jl}, v{48+jl}, v{52+jl}')
    e('v_cmp_gt_u32 vcc, 32, v1')
    k.nop(2)
    e('v_cndmask_b32 v52, v50, v48, vcc'); e('v_cndmask_b32 v53, v51, v49, vcc')
    e('s_mul_i32 s24, s16, 112'); e('s_lshl_b32 s26, s17, 4'); e('s_add_u32 s24, s24, s26'); e('s_lshl_b32 s26, s14, 2'); e('s_add_u32 s24, s24, s26')
    e('s_lshl_b32 s24, s24, 7'); e(f's_add_u32 s24, s24, {CSUMP}')
    e('v_and_b32 v5, 31, v1'); e('v_lshlrev_b32 v5, 2, v5'); e('v_lshl_add_u32 v5, v2, 8, v5')
    e('v_add_u32 v5, s24, v5')
    e('global_store_dword v5, v52, s[12:13]')
    e('global_store_dword v5, v53, s[12:13] offset:128')

def emit_prepack_dn(k, pid_sgpr):
    e = k.e
    e(f's_load_dwordx2 s[4:5], s[0:1], {KA["wdn"]}')
    e(f's_lshl_b32 s16, {pid_sgpr}, 15'); e('s_lshl_b32 s25, s14, 13'); e('s_add_u32 s16, s16, s25')
    e('v_lshlrev_b32 v6, 4, v1')
    e('v_add_u32 v3, s16, v6'); e('v_add_u32 v7, 4096, v3')
    e('s_waitcnt lgkmcnt(0)')
    for n in range(8):
        e(f's_add_u32 m0, s25, {(n>>2)*4096}'); e('s_nop 0')
        e(f'global_load_lds_dwordx4 v{3 if n < 4 else 7}, s[4:5] offset:{(n&3)*1024}')
    e('v_lshrrev_b32 v2, 5, v1')
    e('v_lshlrev_b32 v4, 12, v2')
    e('v_bfe_u32 v5, v1, 2, 2'); e('v_lshl_add_u32 v4, v5, 10, v4')
    e('v_bfe_u32 v5, v1, 4, 1'); e('v_lshl_add_u32 v4, v5, 4, v4')
    e('v_and_b32 v5, 1, v1'); e('v_lshl_add_u32 v4, v5, 5, v4')
    e('v_bfe_u32 v5, v1, 1, 1'); e('v_lshl_add_u32 v4, v5, 3, v4')
    e('s_lshl_b32 s24, s14, 8')
    e('v_add_u32 v4, s24, v4')
    e('s_waitcnt vmcnt(0)'); e('s_barrier')
    D = 16
    for nbl in range(2):
        for kfl in range(2):
            for mt in range(2):
                d = D + 4 * (4 * nbl + 2 * kfl + mt)
                for t in range(2):
                    e(f'ds_read_b64_tr_b16 v[{d+2*t}:{d+2*t+1}], v4 offset:{kfl*16384 + t*8192 + nbl*128 + mt*64}')
    for nbl in range(2):
        e('s_lshl_b32 s24, s14, 1'); e(f's_add_u32 s24, s24, {nbl}'); e('s_mul_i32 s24, s24, 112')
        e(f's_lshl_b32 s26, {pid_sgpr}, 1'); e('s_add_u32 s24, s24, s26'); e('s_lshl_b32 s24, s24, 11')
        e(f's_add_u32 s24, s24, {WP4}')
        e('s_add_u32 s8, s12, s24'); e('s_addc_u32 s9, s13, 0')
        e(f's_waitcnt lgkmcnt({8 - 8*nbl})')
        for q in range(4):
            d = D + 4 * (4 * nbl + q)
            e(f'global_store_dwordx4 v6, v[{d}:{d+3}], s[8:9] offset:{q*1024}' + WT)

WT = ' sc1'
CODE_BYTES = 24576
def emit_code_prefetch(k, start_label, nbytes, vdst):
    e = k.e
    lab = k.newlabel('pc')
    e('s_getpc_b64 s[40:41]')
    k.label(lab)
    e(f's_add_u32 s40, s40, {start_label}-{lab}')
    e('s_addc_u32 s41, s41, 0')
    e(f'v_lshlrev_b32 v{vdst}, 6, v0')
    n = (nbytes + 16383) // 16384
    for i in range(n):
        if i: e(f'v_add_u32 v{vdst}, 0x4000, v{vdst}')
        e(f'v_min_u32 v{vdst+1}, code_end_marker-{start_label}-4, v{vdst}')
        k.vmem(f'global_load_dword v{vdst+2+i}, v{vdst+1}, s[40:41]', 'pf')

def gen_k1(pre_gu=True, pre_dn=True):
    ngu = NPG if pre_gu else 0; ndn = NPD if pre_dn else 0
    k = Kern('k1_kernel', 256 + ngu + ndn, lds=32768, nvgpr=136)
    e = k.e
    END = '.L_k1_end'; LPG = '.L_k1_pg'; LPD = '.L_k1_pd'
    e(f's_cmp_ge_u32 s2, {256+ngu+ndn}'); e(f's_cbranch_scc1 {END}')
    k.stamp()
    e(f's_load_dwordx2 s[12:13], s[0:1], {KA["ws"]}')
    e('v_and_b32 v1, 63, v0')
    e('v_lshrrev_b32 v2, 6, v0')
    e('s_nop 0')
    e('v_readfirstlane_b32 s14, v2')
    if pre_dn: e(f's_cmp_ge_u32 s2, {256+ngu}'); e(f's_cbranch_scc1 {LPD}')
    if pre_gu: e('s_cmp_ge_u32 s2, 256'); e(f's_cbranch_scc1 {LPG}')
    e(f's_load_dwordx2 s[4:5], s[0:1], {KA["x"]}')
    e('s_lshr_b32 s15, s2, 5'); e('s_bfe_u32 s16, s2, 0x30002'); e('s_lshl_b32 s16, s16, 3'); e('s_add_u32 s15, s15, s16')
    e('s_and_b32 s16, s2, 3')
    e('s_lshl_b32 s17, s16, 3'); e('s_lshl_b32 s18, s14, 1'); e('s_add_u32 s17, s17, s18'); e('s_lshl_b32 s17, s17, 6')
    e('s_add_u32 s17, s17, s15'); e('s_lshl_b32 s17, s17, 10')
    e('v_lshlrev_b32 v3, 4, v1')
    e('v_add_u32 v4, s17, v3'); e('v_add_u32 v5, 0x10000, v4')
    X = 8
    e('s_waitcnt lgkmcnt(0)')
    k.vmem(f'global_load_dwordx4 v[{X}:{X+3}], v4, s[4:5]', 'x0')
    k.vmem(f'global_load_dwordx4 v[{X+4}:{X+7}], v5, s[4:5]', 'x1')
    emit_code_prefetch(k, 'k2_kernel', CODE_BYTES, 128)
    k.stamp()
    BA = 16
    AB = 20
    TC = 28
    TS = 44
    SG = 60
    T = 64
    e('v_bfe_u32 v6, v1, 1, 4')
    e('v_and_b32 v7, 1, v1')
    e('v_lshrrev_b32 v2, 5, v1')
    e(f'v_cvt_f32_u32 v{T}, v6'); e(f'v_cvt_f32_u32 v{T+1}, v7'); e(f'v_cvt_f32_u32 v{T+2}, v2')
    e(f'v_fma_f32 v{SG}, v{T+1}, -2.0, 1.0')
    e(f'v_mul_f32 v{T+3}, {f2u(1/16)}, v{T}')
    e(f'v_mul_f32 v{T+4}, {f2u(8.0)}, v{T+2}')
    e(f'v_mul_f32 v{T+4}, v{T+4}, v{T+3}')
    e(f'v_fmac_f32 v{T+4}, {f2u(0.25)}, v{T+1}')
    for j in range(8):
        e(f'v_cos_f32 v{T+8+j}, v{T+4}')
        if j < 7: e(f'v_add_f32 v{T+4}, v{T+4}, v{T+3}')
    e('s_nop 0')
    for p in range(4): e(f'v_cvt_pk_bf16_f32 v{BA+p}, v{T+8+2*p}, v{T+9+2*p}')
    e(f'v_mul_f32 v{T+3}, {f2u(1/512)}, v{T}')
    e(f'v_mul_f32 v{T+5}, v{T+3}, v{SG}')
    e(f'v_mul_f32 v{T+6}, {f2u(5.0)}, v{T+3}'); e(f'v_mul_f32 v{T+7}, {f2u(5.0)}, v{T+5}')
    e(f'v_mul_f32 v{T+4}, 4.0, v{T+2}')
    e(f'v_mul_f32 v{T+8}, v{T+4}, v{T+3}'); e(f'v_mul_f32 v{T+9}, v{T+4}, v{T+5}')
    for r in range(16):
        e(f'v_cos_f32 v{TC+r}, v{T+8}'); e(f'v_sin_f32 v{TS+r}, v{T+9}')
        if r < 15:
            big = (r & 3) == 3
            e(f'v_add_f32 v{T+8}, v{T+8}, v{T+6 if big else T+3}'); e(f'v_add_f32 v{T+9}, v{T+9}, v{T+7 if big else T+5}')
    e('v_and_b32 v6, 15, v1'); e('v_bfe_u32 v7, v1, 4, 1')
    e(f'v_cvt_f32_u32 v{T}, v6'); e(f'v_cvt_f32_u32 v{T+1}, v7')
    e(f'v_mul_f32 v{T+3}, {f2u(1/32)}, v{T}')
    e(f'v_mul_f32 v{T+6}, {f2u(5.0)}, v{T+3}')
    e(f'v_mul_f32 v{T+8}, v{T+4}, v{T+3}')
    e(f'v_fmac_f32 v{T+8}, {f2u(-0.25)}, v{T+1}')
    for r in range(16):
        e(f'v_cos_f32 v{T+10+(r&1)}, v{T+8}')
        if r < 15: e(f'v_add_f32 v{T+8}, v{T+8}, v{T+6 if (r&3)==3 else T+3}')
        else: e('s_nop 0')
        if r & 1: e(f'v_cvt_pk_bf16_f32 v{AB+(r>>1)}, v{T+10}, v{T+11}')
    e('s_lshl_b32 s18, s14, 11')
    e('v_add_u32 v4, s18, v3')
    e('v_lshlrev_b32 v5, 9, v2')
    e('v_bfe_u32 v6, v1, 2, 2'); e('v_lshl_add_u32 v5, v6, 6, v5')
    e('v_bfe_u32 v6, v1, 4, 1'); e('v_lshl_add_u32 v5, v6, 5, v5')
    e('v_and_b32 v6, 3, v1'); e('v_lshl_add_u32 v5, v6, 3, v5')
    e('v_add_u32 v5, s18, v5')
    e('s_mov_b32 s30, 0xffff0000')
    k.stamp()
    AF = 61
    FA = 96
    DA = 64
    for u in range(2):
        k.wait(vm=f'x{u}')
        k.ds(f'ds_write_b128 v4, v[{X+4*u}:{X+4*u+3}] offset:{u*1024}', f'w{u}')
    k.stamp()
    for u in range(2):
        k.wait(lg=f'w{u}')
        for t in range(2):
            k.ds(f'ds_read_b64_tr_b16 v[{FA+4*u+2*t}:{FA+4*u+2*t+1}], v5 offset:{u*1024+t*256}', f'a{u}')
    ST = 104
    for u in range(2):
        s = ST + 4 * u; U = 112
        for i in range(4):
            e(f'v_lshlrev_b32 v{U+2*i}, 16, v{X+4*u+i}'); e(f'v_and_b32 v{U+2*i+1}, s30, v{X+4*u+i}')
        e(f'v_add_f32 v{s}, v{U}, v{U+2}'); e(f'v_add_f32 v{s+1}, v{U+1}, v{U+3}')
        e(f'v_mul_f32 v{s+2}, v{U}, v{U}'); e(f'v_mul_f32 v{s+3}, v{U+1}, v{U+1}')
        for i in range(2, 4):
            e(f'v_add_f32 v{s}, v{s}, v{U+2*i}'); e(f'v_add_f32 v{s+1}, v{s+1}, v{U+2*i+1}')
        for i in range(1, 4):
            e(f'v_fmac_f32 v{s+2}, v{U+2*i}, v{U+2*i}'); e(f'v_fmac_f32 v{s+3}, v{U+2*i+1}, v{U+2*i+1}')
        e(f'v_add_f32 v{s+2}, v{s+2}, v{s+3}')
        k.wait(lg=f'a{u}')
        e(f'v_mfma_f32_32x32x16_bf16 v[{DA+16*u}:{DA+16*u+15}], v[{FA+4*u}:{FA+4*u+3}], v[{BA}:{BA+3}], 0')
    chains = [ST, ST + 1, ST + 2, ST + 4, ST + 5, ST + 6]
    for mod in ('row_shr:1', 'row_shr:2', 'row_shr:4', 'row_shr:8', 'row_bcast:15 row_mask:0xa', 'row_bcast:31 row_mask:0xc'):
        for c in chains:
            m = mod if 'row_mask' in mod else mod + ' row_mask:0xf'
            e(f'v_add_f32_dpp v{c}, v{c}, v{c} {m} bank_mask:0xf' + (' bound_ctrl:0' if 'shr' in mod else ''))
    e('s_nop 0')
    for i, c in enumerate(chains): e(f'v_readlane_b32 s{32+i}, v{c}, 63')
    GP = 96
    for u in range(2):
        d = DA + 16 * u
        for r in range(16):
            e(f'v_mul_f32 v{112+r}, v{TC+r}, v{d+r}')
        for r in range(16):
            e(f'v_fmac_f32_dpp v{112+r}, v{d+r}, v{TS+r} {DPPX}')
        for p in range(8):
            e(f'v_cvt_pk_bf16_f32 v{GP+8*u+p}, v{112+2*p}, v{113+2*p}')
        k.nop(2)
        for ks in range(2):
            cin = '0' if ks == 0 else f'v[{d}:{d+15}]'
            e(f'v_mfma_f32_32x32x16_bf16 v[{d}:{d+15}], v[{AB+4*ks}:{AB+4*ks+3}], v[{GP+8*u+4*ks}:{GP+8*u+4*ks+3}], {cin}')
    for u in range(2):
        a, b, qv = 32 + 3 * u, 33 + 3 * u, 34 + 3 * u
        e(f'v_mov_b32 v12, s{a}')
        e(f'v_add_f32 v13, s{b}, v12')
        e(f'v_subrev_f32 v14, s{b}, v12')
        e('v_mul_f32 v13, 0x3b000000, v13')
        e(f'v_mov_b32 v15, s{qv}')
        e('v_mul_f32 v15, 0x3b000000, v15')
        e('v_fma_f32 v15, -v13, v13, v15')
        e('v_max_f32 v15, 0, v15')
        e('v_add_f32 v15, 0x3727c5ac, v15')
        e(f'v_rsq_f32 v{8+u}, v15')
        e(f'v_max_f32 v12, 0, v{SG}')
        e('v_mul_f32 v14, v14, v12')
        e(f'v_mul_f32 v{10+u}, v14, v{8+u}')
    e('v_cmp_gt_u32 vcc, 2, v1')
    e('s_lshl_b32 s18, s14, 2'); e('s_add_u32 s18, s18, 8192')
    e('v_add_u32 v4, s18, v3')
    for u in range(2):
        d = DA + 16 * u
        for r in range(8):
            e(f'v_fmac_f32_dpp v{d+r}, v{d+8+r}, v{SG} {DPPX}')
        for r in range(8):
            e(f'v_mul_f32 v{d+r}, v{d+r}, v{8+u}')
        e(f'v_cndmask_b32 v{d}, v{d}, v{10+u}, vcc')
    for r in range(8):
        e(f'v_cvt_pk_bf16_f32 v{112+r}, v{DA+r}, v{DA+16+r}')
        e(f'ds_write_b32 v4, v{112+r} offset:{r*1024}')
    e('v_bfe_u32 v6, v1, 1, 4')
    e('v_lshl_add_u32 v6, v2, 6, v6')
    e('s_lshl_b32 s18, s14, 4'); e('s_sub_u32 s18, s18, 1')
    e('v_add_u32 v6, s18, v6')
    e('v_add_u32 v7, 128, v6')
    e('v_and_b32 v6, 255, v6')
    e('s_lshr_b32 s18, s15, 4'); e('s_lshl_b32 s18, s18, 13'); e('s_lshl_b32 s19, s16, 8'); e('s_add_u32 s18, s18, s19')
    e('s_and_b32 s19, s15, 15'); e('s_lshl_b32 s19, s19, 4'); e('s_add_u32 s18, s18, s19')
    if CBUF: e(f's_add_u32 s18, s18, {CBUF}')
    e('v_and_b32 v12, 1, v1'); e('v_lshlrev_b32 v12, 10, v12'); e('v_add_u32 v12, s18, v12')
    for i in range(2):
        e(f'v_lshrrev_b32 v13, 2, v{6+i}'); e('v_lshl_add_u32 v13, v13, 15, v12')
        e(f'v_and_b32 v14, 3, v{6+i}'); e(f'v_lshl_add_u32 v{6+i}, v14, 11, v13')
    e('v_lshlrev_b32 v5, 4, v0')
    e('v_and_b32 v12, 7, v0'); e('v_lshrrev_b32 v13, 3, v0')
    e('v_lshlrev_b32 v8, 10, v12'); e('v_lshl_add_u32 v8, v13, 3, v8')
    e('v_add_u32 v9, 8, v8')
    e('v_add_u32 v10, 264, v8')
    e('v_lshlrev_b32 v14, 10, v12')
    e('v_cmp_eq_u32 vcc, 31, v13')
    e('v_lshlrev_b32 v11, 3, v13'); e('v_sub_u32 v11, 760, v11'); e('v_add_u32 v11, v11, v14')
    e('v_cndmask_b32 v10, v10, v14, vcc')
    e('s_lshl_b32 s18, s15, 15'); e('s_lshl_b32 s19, s16, 7'); e('s_add_u32 s18, s18, s19'); e(f's_add_u32 s18, s18, {HBUF}')
    e('v_lshlrev_b32 v15, 9, v13'); e('v_lshl_add_u32 v15, v12, 4, v15'); e('v_add_u32 v15, s18, v15')
    e('v_add_u32 v14, 0x4000, v15')
    e('s_waitcnt lgkmcnt(0)'); e('s_barrier')
    k.stamp()
    e('ds_read_b128 v[16:19], v5 offset:8192'); e('ds_read_b128 v[20:23], v5 offset:12288')
    for i in range(2):
        e(f'ds_read_b64 v[{24+8*i}:{25+8*i}], v8 offset:{256*i}')
        e(f'ds_read_b32 v{26+8*i}, v{9+i}')
        e(f'ds_read_b64 v[{30+8*i}:{31+8*i}], v11 offset:{256*(1-i)}')
    e('s_waitcnt lgkmcnt(7)')
    e('global_store_dwordx4 v6, v[16:19], s[12:13]')
    e('s_waitcnt lgkmcnt(6)')
    e('global_store_dwordx4 v7, v[20:23], s[12:13]')
    for i in range(2):
        e(f's_waitcnt lgkmcnt({3-3*i})')
        e(f'v_alignbit_b32 v{28+8*i}, v{25+8*i}, v{24+8*i}, 16')
        e(f'v_alignbit_b32 v{29+8*i}, v{26+8*i}, v{25+8*i}, 16')
        e(f'global_store_dwordx4 v15, v[{28+8*i}:{31+8*i}], s[12:13] offset:0' if i == 0 else f'global_store_dwordx4 v14, v[{28+8*i}:{31+8*i}], s[12:13]')
    k.stamp_flush(0)
    e('s_endpgm')
    if pre_gu:
        k.label(LPG); k.nst = 1; k.vm = []; k.lg = []
        e('s_sub_u32 s15, s2, 256')
        emit_prepack_gu(k, 's15')
        k.stamp_flush(0)
        e('s_endpgm')
    if pre_dn:
        k.label(LPD); k.nst = 1; k.vm = []; k.lg = []
        e(f's_sub_u32 s15, s2, {256+ngu}')
        emit_prepack_dn(k, 's15')
        k.stamp_flush(0)
    k.label(END)
    e('s_endpgm')
    return k
```

```python
import re, os
STAMPS = bool(os.environ.get('STAMPS'))
STFLAG = os.environ.get('STFLAG', '')
DBGT = bool(os.environ.get('DBGT'))

class Kern:
    def __init__(self, name, grid, block=256, lds=0, nvgpr=256, nagpr=0, nsgpr=102):
        self.name, self.grid, self.block, self.lds = name, grid, block, lds
        self.nvgpr, self.nagpr, self.nsgpr = nvgpr, nagpr, nsgpr
        self.L = []
        self.vm = []
        self.lg = []
        self.nlab = 0
        self.nst = 0
    def e(self, s):
        for line in s.strip().split('\n'):
            line = line.strip()
            if STFLAG and line.startswith('global_store') and 's[12:13]' in line: line += ' ' + STFLAG
            if line: self.L.append(line)
    def c(self, s): self.L.append('; ' + s)
    def label(self, l): self.L.append(f'{l}:')
    def newlabel(self, base='L'):
        self.nlab += 1
        return f'.{base}_{self.name}_{self.nlab}'
    def vmem(self, s, tag=None):
        self.e(s); self.vm.append(tag)
    def ds(self, s, tag=None):
        self.e(s); self.lg.append(tag)
    def _cnt(self, q, tags):
        if not isinstance(tags, (list, tuple, set)): tags = [tags]
        idx = -1
        for i, t in enumerate(q):
            if t in tags: idx = i
        return idx
    def wait(self, vm=None, lg=None, force=False):
        parts = []
        if vm is not None:
            if vm == 'all':
                if self.vm or force: parts.append('vmcnt(0)'); self.vm = []
            else:
                idx = self._cnt(self.vm, vm)
                if idx >= 0:
                    n = len(self.vm) - 1 - idx
                    assert n <= 63
                    parts.append(f'vmcnt({n})'); self.vm = self.vm[idx + 1:]
        if lg is not None:
            if lg == 'all':
                if self.lg or force: parts.append('lgkmcnt(0)'); self.lg = []
            else:
                idx = self._cnt(self.lg, lg)
                if idx >= 0:
                    n = len(self.lg) - 1 - idx
                    if n > 15: n = 15
                    assert len(self.lg) - 1 - idx <= 15, 'lgkm overflow'
                    parts.append(f'lgkmcnt({n})'); self.lg = self.lg[idx + 1:]
        if parts: self.e('s_waitcnt ' + ' '.join(parts))
    def nop(self, n):
        while n > 0:
            k = min(n, 16); self.e(f's_nop {k-1}'); n -= k
    def stamp(self):
        if DBGT and self.nst == 0:
            self.e('s_memrealtime s[96:97]'); self.nst = 1
        if not STAMPS: return
        if self.nst == 0: self.e('s_memrealtime s[96:97]')
        assert self.nst < 14
        self.e(f's_memtime s[{64+2*self.nst}:{65+2*self.nst}]')
        self.nst += 1
    def stamp_flush(self, kidx, wave_sgpr='s14'):
        if DBGT:
            e = self.e
            e('s_load_dwordx2 s[100:101], s[0:1], 80')
            e('s_waitcnt vmcnt(0)')
            e('s_memrealtime s[98:99]')
            e('s_waitcnt lgkmcnt(0)')
            e(f's_sub_u32 s100, s100, {512*kidx}'); e('s_subb_u32 s101, s101, 0')
            e('s_not_b32 s95, s96')
            e('v_mov_b32 v0, 0'); e('v_mov_b32 v1, s95'); e('v_mov_b32 v2, s96'); e('v_mov_b32 v3, s98')
            e('s_mov_b64 exec, 1')
            e(f'global_atomic_umax v0, v1, s[100:101] offset:{16*kidx}')
            e(f'global_atomic_umax v0, v2, s[100:101] offset:{16*kidx+4}')
            e(f'global_atomic_umax v0, v3, s[100:101] offset:{16*kidx+8}')
        if not STAMPS: return
        self.stamp()
        e = self.e
        e('s_memrealtime s[98:99]')
        e('s_load_dwordx2 s[100:101], s[0:1], 88')
        e(f's_lshl_b32 s94, s2, 2'); e(f's_add_u32 s94, s94, {wave_sgpr}'); e('s_lshl_b32 s94, s94, 6')
        e(f's_add_u32 s94, s94, {0x2000000 + kidx * 0x100000}')
        e('s_waitcnt lgkmcnt(0) vmcnt(0)')
        e('s_memrealtime s[92:93]')
        e('s_waitcnt lgkmcnt(0)')
        e('v_mov_b32 v0, s94')
        vals = ['s96', 's98', 's92'] + [f's{64+2*i}' for i in range(self.nst)]
        for i, v in enumerate(vals):
            e(f'v_mov_b32 v1, {v}')
            e(f'global_store_dword v0, v1, s[100:101] offset:{4*i}')
            e('s_nop 1')
    def text(self):
        out = [f'.globl {self.name}', '.p2align 8', f'.type {self.name},@function', f'{self.name}:']
        for l in self.L:
            out.append(l if l.endswith(':') else '    ' + l)
        return '\n'.join(out)
    def desc(self):
        ao = (self.nvgpr + 3) // 4 * 4
        nf = ao + self.nagpr if self.nagpr else self.nvgpr
        return '\n'.join(['.p2align 6', f'.amdhsa_kernel {self.name}', f'  .amdhsa_next_free_vgpr {nf}', f'  .amdhsa_next_free_sgpr {self.nsgpr}',
                          f'  .amdhsa_accum_offset {ao}', '  .amdhsa_group_segment_fixed_size 0', '  .amdhsa_kernarg_size 96',
                          '  .amdhsa_user_sgpr_count 2', '  .amdhsa_user_sgpr_kernarg_segment_ptr 1', '  .amdhsa_system_sgpr_workgroup_id_x 1',
                          '.end_amdhsa_kernel'])

def assemble_file(kerns, header='', launches=None):
    L = []
    if header: L.append(header.rstrip())
    for k in (launches or kerns):
        L.append(f'; @launch kernel={k.name} grid=({k.grid},1,1) block=({k.block},1,1) lds={k.lds}')
    L.append('.amdgcn_target "amdgcn-amd-amdhsa--gfx950"')
    L.append('.text')
    for k in kerns: L.append(k.text())
    L.append('code_end_marker:')
    L.append('.section .rodata,"a"')
    for k in kerns: L.append(k.desc())
    return '\n'.join(L) + '\n'

_reg = re.compile(r'\b([vas])(\d+)\b|\b([vas])\[(\d+):(\d+)\]')
def regs_of(op):
    out = set()
    for m in _reg.finditer(op):
        if m.group(1): out.add((m.group(1), int(m.group(2))))
        else:
            for i in range(int(m.group(4)), int(m.group(5)) + 1): out.add((m.group(3), i))
    if re.search(r'\bvcc\b', op): out.add(('s', 'vcc'))
    if re.search(r'\bm0\b', op): out.add(('s', 'm0'))
    if re.search(r'\bexec\b', op): out.add(('s', 'exec'))
    return out

TRANS = ('v_exp_', 'v_log_', 'v_rcp_', 'v_rsq_', 'v_sqrt_', 'v_sin_', 'v_cos_')
def parse(line):
    line = line.split(';')[0].strip()
    if not line or line.endswith(':') or line.startswith('.'): return None
    parts = line.split(None, 1)
    mn = parts[0]; rest = parts[1] if len(parts) > 1 else ''
    ops = [o.strip() for o in re.split(r',(?![^\[]*\])', rest)] if rest else []
    d = dict(mn=mn, line=line, w=set(), r=set(), cls='other', ops=ops)
    if mn.startswith('v_mfma'):
        d['cls'] = 'mfma'; d['w'] = regs_of(ops[0]); d['ra'] = regs_of(ops[1]) | regs_of(ops[2]); d['rc'] = regs_of(ops[3]); d['r'] = d['ra'] | d['rc']
        d['passes'] = 8 if '32x32x16' in mn else (4 if '16x16x32' in mn else 16)
    elif mn.startswith('v_'):
        d['cls'] = 'valu'
        if mn.startswith('v_cmp'):
            d['w'] = regs_of(ops[0]); d['r'] = set().union(*[regs_of(o) for o in ops[1:]])
        elif mn.startswith('v_permlane'):
            d['w'] = regs_of(ops[0]) | regs_of(ops[1]); d['r'] = set(d['w']); d['perm'] = True
        else:
            d['w'] = regs_of(ops[0]); d['r'] = set().union(*[regs_of(o) for o in ops[1:]]) if len(ops) > 1 else set()
            if '_co_' in mn: d['w'] |= regs_of(ops[1])
            if mn.startswith(('v_fmac', 'v_dot2c', 'v_pk_fmac')): d['r'] |= d['w']
            if mn.startswith('v_cndmask') and len(ops) == 3: d['r'].add(('s', 'vcc'))
        d['trans'] = mn.startswith(TRANS)
        d['dpp'] = '_dpp' in mn or 'quad_perm' in line or 'row_' in line
        d['dot'] = mn.startswith('v_dot')
        d['rfl'] = mn.startswith(('v_readfirstlane', 'v_readlane'))
    elif mn.startswith(('global_', 'buffer_', 'flat_')):
        d['cls'] = 'vmem'
        if '_lds_' in mn or line.rstrip().endswith(' lds'):
            d['r'] = set().union(*[regs_of(o) for o in ops]); d['r'].add(('s', 'm0')); d['dma'] = True
        elif 'load' in mn:
            d['w'] = regs_of(ops[0]); d['r'] = set().union(*[regs_of(o) for o in ops[1:]])
        else:
            d['r'] = set().union(*[regs_of(o) for o in ops])
            if 'x3' in mn or 'x4' in mn:
                d['widestore'] = regs_of(ops[1]) if mn.startswith('global') else regs_of(ops[0])
    elif mn.startswith('ds_'):
        d['cls'] = 'ds'
        if 'read' in mn or 'permute' in mn or 'swizzle' in mn:
            d['w'] = regs_of(ops[0]); d['r'] = set().union(*[regs_of(o) for o in ops[1:]])
        else:
            d['r'] = set().union(*[regs_of(o) for o in ops])
    elif mn.startswith('s_'):
        d['cls'] = 'salu'
        if mn in ('s_nop',): d['nop'] = int(ops[0], 0) + 1
        elif mn.startswith(('s_waitcnt', 's_barrier', 's_endpgm', 's_branch', 's_cbranch', 's_setprio', 's_sleep')): pass
        elif mn.startswith('s_cmp'): d['r'] = set().union(*[regs_of(o) for o in ops])
        else:
            d['w'] = regs_of(ops[0]); d['r'] = set().union(*[regs_of(o) for o in ops[1:]]) if len(ops) > 1 else set()
            if 'saveexec' in mn: d['w'].add(('s', 'exec'))
    return d

def lint(kern):
    ins = [p for p in (parse(l) for l in kern.L) if p]
    probs = []
    for i, c in enumerate(ins):
        dist = 0
        for jx in range(i - 1, max(-1, i - 25), -1):
            p = ins[jx]
            need = 0; why = ''
            def chk(n, w):
                nonlocal need, why
                if n > need: need, why = n, w
            vw = {r for r in p['w'] if r[0] in 'va'}; sw = {r for r in p['w'] if r[0] == 's'}
            if p['cls'] == 'valu':
                if c['cls'] == 'mfma' and vw & c['r']: chk(2, 'valu->mfma')
                if c['cls'] == 'valu':
                    if c.get('dpp') and vw & c['r']: chk(2, 'valu->dpp')
                    if c.get('perm') and vw & c['r']: chk(2, 'valu->permlane')
                    if c.get('rfl') and vw & c['r']: chk(1, 'valu->readlane')
                    if p.get('trans') and not c.get('trans') and vw & c['r']: chk(1, 'trans->valu')
                    if p.get('dot') and (vw & (c['r'] | c['w'])) and not (c['mn'] == p['mn'] and not (vw & (regs_of(c['ops'][1]) | regs_of(c['ops'][2])))): chk(3, 'dot->other')
                    if sw & c['r']: chk(2, 'valu sgpr->valu')
                if p.get('trans') and c['cls'] in ('mfma', 'vmem', 'ds') and vw & c['r']: chk(2 if c['cls']=='mfma' else 1, 'trans->x')
                if p.get('dot') and c['cls'] in ('mfma', 'vmem', 'ds') and vw & c['r']: chk(3, 'dot->other')
                if c['cls'] == 'vmem' and sw & c['r']: chk(5, 'valu sgpr->vmem')
                if c['cls'] == 'salu' and sw & c['r']: chk(1, 'valu sgpr->salu(pad)')
            if p['cls'] == 'mfma':
                ps = p['passes']
                tbl_ab = {2: 5, 4: 8, 8: 12, 16: 20}[ps]
                if c['cls'] == 'mfma':
                    if vw & c['ra']: chk(tbl_ab, 'mfma->mfma AB')
                    if vw & c['rc']:
                        if not (c['rc'] == vw and c['passes'] == ps): chk({2: 4, 4: 6, 8: 10, 16: 18}[ps], 'mfma->mfma C overlap')
                    elif vw & c['w']: chk(tbl_ab, 'mfma WAW mfma')
                elif c['cls'] in ('valu', 'vmem', 'ds'):
                    if vw & (c['r'] | c['w']): chk(tbl_ab, 'mfma->valu/mem')
                if c['cls'] == 'valu' and (p['rc'] & c['w']): chk({2: 1, 4: 3, 8: 7, 16: 15}[ps], 'mfma srcC WAR')
            if p['cls'] == 'salu' and ('s', 'm0') in p['w'] and c.get('dma'): chk(1, 'm0->dma')
            if p.get('widestore') and (p['widestore'] & c['w']) and c['cls'] in ('valu', 'mfma', 'vmem', 'ds'): chk(2, 'widestore WAR')
            if need > dist:
                probs.append(f"{kern.name}: need {need} have {dist} [{why}]\n    P: {p['line']}\n    C: {c['line']}")
            dist += p.get('nop', 1)
            if dist >= 20: break
    return probs
```

```python
import re, os
STAMPS = bool(os.environ.get('STAMPS'))
STFLAG = os.environ.get('STFLAG', '')
DBGT = bool(os.environ.get('DBGT'))

class Kern:
    def __init__(self, name, grid, block=256, lds=0, nvgpr=256, nagpr=0, nsgpr=102):
        self.name, self.grid, self.block, self.lds = name, grid, block, lds
        self.nvgpr, self.nagpr, self.nsgpr = nvgpr, nagpr, nsgpr
        self.L = []
        self.vm = []
        self.lg = []
        self.nlab = 0
        self.nst = 0
    def e(self, s):
        for line in s.strip().split('\n'):
            line = line.strip()
            if STFLAG and line.startswith('global_store') and 's[12:13]' in line: line += ' ' + STFLAG
            if line: self.L.append(line)
    def c(self, s): self.L.append('; ' + s)
    def label(self, l): self.L.append(f'{l}:')
    def newlabel(self, base='L'):
        self.nlab += 1
        return f'.{base}_{self.name}_{self.nlab}'
    def vmem(self, s, tag=None):
        self.e(s); self.vm.append(tag)
    def ds(self, s, tag=None):
        self.e(s); self.lg.append(tag)
    def _cnt(self, q, tags):
        if not isinstance(tags, (list, tuple, set)): tags = [tags]
        idx = -1
        for i, t in enumerate(q):
            if t in tags: idx = i
        return idx
    def wait(self, vm=None, lg=None, force=False):
        parts = []
        if vm is not None:
            if vm == 'all':
                if self.vm or force: parts.append('vmcnt(0)'); self.vm = []
            else:
                idx = self._cnt(self.vm, vm)
                if idx >= 0:
                    n = len(self.vm) - 1 - idx
                    assert n <= 63
                    parts.append(f'vmcnt({n})'); self.vm = self.vm[idx + 1:]
        if lg is not None:
            if lg == 'all':
                if self.lg or force: parts.append('lgkmcnt(0)'); self.lg = []
            else:
                idx = self._cnt(self.lg, lg)
                if idx >= 0:
                    n = len(self.lg) - 1 - idx
                    if n > 15: n = 15
                    assert len(self.lg) - 1 - idx <= 15, 'lgkm overflow'
                    parts.append(f'lgkmcnt({n})'); self.lg = self.lg[idx + 1:]
        if parts: self.e('s_waitcnt ' + ' '.join(parts))
    def nop(self, n):
        while n > 0:
            k = min(n, 16); self.e(f's_nop {k-1}'); n -= k
    def stamp(self):
        if DBGT and self.nst == 0:
            self.e('s_memrealtime s[96:97]'); self.nst = 1
        if not STAMPS: return
        if self.nst == 0: self.e('s_memrealtime s[96:97]')
        assert self.nst < 14
        self.e(f's_memtime s[{64+2*self.nst}:{65+2*self.nst}]')
        self.nst += 1
    def stamp_flush(self, kidx, wave_sgpr='s14'):
        if DBGT:
            e = self.e
            e('s_load_dwordx2 s[100:101], s[0:1], 80')
            e('s_waitcnt vmcnt(0)')
            e('s_memrealtime s[98:99]')
            e('s_waitcnt lgkmcnt(0)')
            e(f's_add_u32 s100, s100, {512*(3-kidx)}'); e('s_addc_u32 s101, s101, 0')
            lab = self.newlabel('dbg')
            e(f's_cmp_lg_u32 {wave_sgpr}, 0'); e(f's_cbranch_scc1 {lab}')
            e('s_and_b32 s95, s2, 7'); e('s_cmp_lg_u32 s95, 0'); e(f's_cbranch_scc1 {lab}')
            e('s_not_b32 s95, s96')
            e('v_mov_b32 v0, 0'); e('v_mov_b32 v1, s95'); e('v_mov_b32 v2, s96'); e('v_mov_b32 v3, s98')
            e('s_mov_b64 exec, 1')
            e(f'global_atomic_umax v0, v1, s[100:101] offset:{16*kidx}')
            e(f'global_atomic_umax v0, v2, s[100:101] offset:{16*kidx+4}')
            e(f'global_atomic_umax v0, v3, s[100:101] offset:{16*kidx+8}')
            self.label(lab)
        if not STAMPS: return
        self.stamp()
        e = self.e
        e('s_memrealtime s[98:99]')
        e('s_load_dwordx2 s[100:101], s[0:1], 88')
        e(f's_lshl_b32 s94, s2, 2'); e(f's_add_u32 s94, s94, {wave_sgpr}'); e('s_lshl_b32 s94, s94, 6')
        e(f's_add_u32 s94, s94, {0x2000000 + kidx * 0x100000}')
        e('s_waitcnt lgkmcnt(0) vmcnt(0)')
        e('s_memrealtime s[92:93]')
        e('s_waitcnt lgkmcnt(0)')
        e('v_mov_b32 v0, s94')
        vals = ['s96', 's98', 's92'] + [f's{64+2*i}' for i in range(self.nst)]
        for i, v in enumerate(vals):
            e(f'v_mov_b32 v1, {v}')
            e(f'global_store_dword v0, v1, s[100:101] offset:{4*i}')
            e('s_nop 1')
    def text(self):
        out = [f'.globl {self.name}', '.p2align 8', f'.type {self.name},@function', f'{self.name}:']
        for l in self.L:
            out.append(l if l.endswith(':') else '    ' + l)
        return '\n'.join(out)
    def desc(self):
        ao = (self.nvgpr + 3) // 4 * 4
        nf = ao + self.nagpr if self.nagpr else self.nvgpr
        return '\n'.join(['.p2align 6', f'.amdhsa_kernel {self.name}', f'  .amdhsa_next_free_vgpr {nf}', f'  .amdhsa_next_free_sgpr {self.nsgpr}',
                          f'  .amdhsa_accum_offset {ao}', '  .amdhsa_group_segment_fixed_size 0', '  .amdhsa_kernarg_size 96',
                          '  .amdhsa_user_sgpr_count 2', '  .amdhsa_user_sgpr_kernarg_segment_ptr 1', '  .amdhsa_system_sgpr_workgroup_id_x 1',
                          '.end_amdhsa_kernel'])

def assemble_file(kerns, header='', launches=None):
    L = []
    if header: L.append(header.rstrip())
    for k in (launches or kerns):
        L.append(f'; @launch kernel={k.name} grid=({k.grid},1,1) block=({k.block},1,1) lds={k.lds}')
    L.append('.amdgcn_target "amdgcn-amd-amdhsa--gfx950"')
    L.append('.text')
    for k in kerns: L.append(k.text())
    L.append('code_end_marker:')
    L.append('.section .rodata,"a"')
    for k in kerns: L.append(k.desc())
    return '\n'.join(L) + '\n'

_reg = re.compile(r'\b([vas])(\d+)\b|\b([vas])\[(\d+):(\d+)\]')
def regs_of(op):
    out = set()
    for m in _reg.finditer(op):
        if m.group(1): out.add((m.group(1), int(m.group(2))))
        else:
            for i in range(int(m.group(4)), int(m.group(5)) + 1): out.add((m.group(3), i))
    if re.search(r'\bvcc\b', op): out.add(('s', 'vcc'))
    if re.search(r'\bm0\b', op): out.add(('s', 'm0'))
    if re.search(r'\bexec\b', op): out.add(('s', 'exec'))
    return out

TRANS = ('v_exp_', 'v_log_', 'v_rcp_', 'v_rsq_', 'v_sqrt_', 'v_sin_', 'v_cos_')
def parse(line):
    line = line.split(';')[0].strip()
    if not line or line.endswith(':') or line.startswith('.'): return None
    parts = line.split(None, 1)
    mn = parts[0]; rest = parts[1] if len(parts) > 1 else ''
    ops = [o.strip() for o in re.split(r',(?![^\[]*\])', rest)] if rest else []
    d = dict(mn=mn, line=line, w=set(), r=set(), cls='other', ops=ops)
    if mn.startswith('v_mfma'):
        d['cls'] = 'mfma'; d['w'] = regs_of(ops[0]); d['ra'] = regs_of(ops[1]) | regs_of(ops[2]); d['rc'] = regs_of(ops[3]); d['r'] = d['ra'] | d['rc']
        d['passes'] = 8 if '32x32x16' in mn else (4 if '16x16x32' in mn else 16)
    elif mn.startswith('v_'):
        d['cls'] = 'valu'
        if mn.startswith('v_cmp'):
            d['w'] = regs_of(ops[0]); d['r'] = set().union(*[regs_of(o) for o in ops[1:]])
        elif mn.startswith('v_permlane'):
            d['w'] = regs_of(ops[0]) | regs_of(ops[1]); d['r'] = set(d['w']); d['perm'] = True
        else:
            d['w'] = regs_of(ops[0]); d['r'] = set().union(*[regs_of(o) for o in ops[1:]]) if len(ops) > 1 else set()
            if '_co_' in mn: d['w'] |= regs_of(ops[1])
            if mn.startswith(('v_fmac', 'v_dot2c', 'v_pk_fmac')): d['r'] |= d['w']
            if mn.startswith('v_cndmask') and len(ops) == 3: d['r'].add(('s', 'vcc'))
        d['trans'] = mn.startswith(TRANS)
        d['dpp'] = '_dpp' in mn or 'quad_perm' in line or 'row_' in line
        d['dot'] = mn.startswith('v_dot')
        d['rfl'] = mn.startswith(('v_readfirstlane', 'v_readlane'))
    elif mn.startswith(('global_', 'buffer_', 'flat_')):
        d['cls'] = 'vmem'
        if '_lds_' in mn or line.rstrip().endswith(' lds'):
            d['r'] = set().union(*[regs_of(o) for o in ops]); d['r'].add(('s', 'm0')); d['dma'] = True
        elif 'load' in mn:
            d['w'] = regs_of(ops[0]); d['r'] = set().union(*[regs_of(o) for o in ops[1:]])
        else:
            d['r'] = set().union(*[regs_of(o) for o in ops])
            if 'x3' in mn or 'x4' in mn:
                d['widestore'] = regs_of(ops[1]) if mn.startswith('global') else regs_of(ops[0])
    elif mn.startswith('ds_'):
        d['cls'] = 'ds'
        if 'read' in mn or 'permute' in mn or 'swizzle' in mn:
            d['w'] = regs_of(ops[0]); d['r'] = set().union(*[regs_of(o) for o in ops[1:]])
        else:
            d['r'] = set().union(*[regs_of(o) for o in ops])
    elif mn.startswith('s_'):
        d['cls'] = 'salu'
        if mn in ('s_nop',): d['nop'] = int(ops[0], 0) + 1
        elif mn.startswith(('s_waitcnt', 's_barrier', 's_endpgm', 's_branch', 's_cbranch', 's_setprio', 's_sleep')): pass
        elif mn.startswith('s_cmp'): d['r'] = set().union(*[regs_of(o) for o in ops])
        else:
            d['w'] = regs_of(ops[0]); d['r'] = set().union(*[regs_of(o) for o in ops[1:]]) if len(ops) > 1 else set()
            if 'saveexec' in mn: d['w'].add(('s', 'exec'))
    return d

def lint(kern):
    ins = [p for p in (parse(l) for l in kern.L) if p]
    probs = []
    for i, c in enumerate(ins):
        dist = 0
        for jx in range(i - 1, max(-1, i - 25), -1):
            p = ins[jx]
            need = 0; why = ''
            def chk(n, w):
                nonlocal need, why
                if n > need: need, why = n, w
            vw = {r for r in p['w'] if r[0] in 'va'}; sw = {r for r in p['w'] if r[0] == 's'}
            if p['cls'] == 'valu':
                if c['cls'] == 'mfma' and vw & c['r']: chk(2, 'valu->mfma')
                if c['cls'] == 'valu':
                    if c.get('dpp') and vw & c['r']: chk(2, 'valu->dpp')
                    if c.get('perm') and vw & c['r']: chk(2, 'valu->permlane')
                    if c.get('rfl') and vw & c['r']: chk(1, 'valu->readlane')
                    if p.get('trans') and not c.get('trans') and vw & c['r']: chk(1, 'trans->valu')
                    if p.get('dot') and (vw & (c['r'] | c['w'])) and not (c['mn'] == p['mn'] and not (vw & (regs_of(c['ops'][1]) | regs_of(c['ops'][2])))): chk(3, 'dot->other')
                    if sw & c['r']: chk(2, 'valu sgpr->valu')
                if p.get('trans') and c['cls'] in ('mfma', 'vmem', 'ds') and vw & c['r']: chk(2 if c['cls']=='mfma' else 1, 'trans->x')
                if p.get('dot') and c['cls'] in ('mfma', 'vmem', 'ds') and vw & c['r']: chk(3, 'dot->other')
                if c['cls'] == 'vmem' and sw & c['r']: chk(5, 'valu sgpr->vmem')
                if c['cls'] == 'salu' and sw & c['r']: chk(1, 'valu sgpr->salu(pad)')
            if p['cls'] == 'mfma':
                ps = p['passes']
                tbl_ab = {2: 5, 4: 8, 8: 12, 16: 20}[ps]
                if c['cls'] == 'mfma':
                    if vw & c['ra']: chk(tbl_ab, 'mfma->mfma AB')
                    if vw & c['rc']:
                        if not (c['rc'] == vw and c['passes'] == ps): chk({2: 4, 4: 6, 8: 10, 16: 18}[ps], 'mfma->mfma C overlap')
                    elif vw & c['w']: chk(tbl_ab, 'mfma WAW mfma')
                elif c['cls'] in ('valu', 'vmem', 'ds'):
                    if vw & (c['r'] | c['w']): chk(tbl_ab, 'mfma->valu/mem')
                if c['cls'] == 'valu' and (p['rc'] & c['w']): chk({2: 1, 4: 3, 8: 7, 16: 15}[ps], 'mfma srcC WAR')
            if p['cls'] == 'salu' and ('s', 'm0') in p['w'] and c.get('dma'): chk(1, 'm0->dma')
            if p.get('widestore') and (p['widestore'] & c['w']) and c['cls'] in ('valu', 'mfma', 'vmem', 'ds'): chk(2, 'widestore WAR')
            if need > dist:
                probs.append(f"{kern.name}: need {need} have {dist} [{why}]\n    P: {p['line']}\n    C: {c['line']}")
            dist += p.get('nop', 1)
            if dist >= 20: break
    return probs
```

```python
import sys
sys.path.insert(0, 'dev')
from asmlib import *
from gen import *
import os

NPG, NPD = 112, 56
DPPX = 'quad_perm:[1,0,3,2] row_mask:0xf bank_mask:0xf'

def emit_prepack_gu(k, pid_sgpr):
    e = k.e
    e(f's_load_dwordx4 s[4:7], s[0:1], {KA["wg"]}')
    e(f's_mul_i32 s16, {pid_sgpr}, 9363'); e('s_lshr_b32 s16, s16, 16')
    e('s_mul_i32 s17, s16, 7'); e(f's_sub_u32 s17, {pid_sgpr}, s17')
    e('s_lshr_b32 s18, s14, 1')
    e('s_and_b32 s19, s14, 1')
    e('v_lshrrev_b32 v2, 5, v1')
    e('v_and_b32 v3, 31, v1')
    e('v_lshlrev_b32 v3, 4, v3')
    e('s_lshl_b32 s20, s17, 9')
    e('v_add_u32 v3, s20, v3')
    e('s_lshl_b32 s21, s16, 2'); e('s_lshl_b32 s22, s19, 1'); e('s_add_u32 s21, s21, s22')
    e('s_lshl_b32 s21, s21, 2')
    e('s_movk_i32 s23, 3584')
    for n in range(8):
        g = n >> 2; i0 = (2 * n) & 7
        if i0 < 4:
            e(f's_add_u32 s24, s21, {4*g + 1 + i0}')
            e('v_add_u32 v4, s24, v2'); e('v_and_b32 v4, 255, v4')
        else:
            e(f's_sub_u32 s24, {508 - 4*g + i0 - 4}, s21')
            e('v_add_u32 v4, s24, v2')
        e(f'v_mad_u32_u24 v{8+n}, v4, s23, v3')
    e('s_lshl_b32 s25, s14, 13')
    e('s_waitcnt lgkmcnt(0)')
    e('s_cmp_eq_u32 s18, 0')
    e('s_cselect_b32 s4, s4, s6'); e('s_cselect_b32 s5, s5, s7')
    for n in range(8):
        e(f's_add_u32 m0, s25, {n*1024}'); e('s_nop 0')
        e(f'global_load_lds_dwordx4 v{8+n}, s[4:5]')
    e('v_bfe_u32 v4, v1, 4, 1'); e('v_lshlrev_b32 v4, 14, v4')
    e('v_lshl_add_u32 v4, v2, 12, v4')
    e('v_bfe_u32 v5, v1, 2, 2'); e('v_lshl_add_u32 v4, v5, 9, v4')
    e('v_and_b32 v5, 3, v1'); e('v_lshl_add_u32 v4, v5, 3, v4')
    e('s_lshl_b32 s24, s14, 7')
    e('v_add_u32 v4, s24, v4')
    e('v_lshlrev_b32 v6, 4, v1')
    e(f's_mov_b32 s30, {ONES}')
    e('s_waitcnt vmcnt(0)'); e('s_barrier')
    D = 16
    for jl in range(4):
        for kkl in range(2):
            d = D + 4 * (2 * jl + kkl)
            for t in range(2):
                e(f'ds_read_b64_tr_b16 v[{d+2*t}:{d+2*t+1}], v4 offset:{kkl*8192 + t*2048 + jl*32}')
    for jl in range(4):
        e('s_lshl_b32 s24, s17, 4'); e('s_lshl_b32 s26, s14, 2'); e('s_add_u32 s24, s24, s26'); e(f's_add_u32 s24, s24, {jl}')
        e('s_mul_i32 s26, s24, 9363'); e('s_lshr_b32 s26, s26, 16')
        e('s_mul_i32 s27, s26, 7'); e('s_sub_u32 s27, s24, s27')
        e('s_lshl_b32 s26, s26, 5'); e('s_lshl_b32 s28, s16, 1'); e('s_add_u32 s26, s26, s28')
        e('s_mul_i32 s26, s26, 7'); e('s_add_u32 s26, s26, s27'); e('s_lshl_b32 s26, s26, 10')
        e(f's_add_u32 s26, s26, {WP3}')
        e('s_add_u32 s8, s12, s26'); e('s_addc_u32 s9, s13, 0')
        e(f's_add_u32 s10, s8, 7168'); e('s_addc_u32 s11, s9, 0')
        e(f's_waitcnt lgkmcnt({12 - 4*jl})')
        d = D + 8 * jl
        e(f'global_store_dwordx4 v6, v[{d}:{d+3}], s[8:9]' + WT)
        e(f'global_store_dwordx4 v6, v[{d+4}:{d+7}], s[10:11]' + WT)
        e(f'v_mov_b32 v{48+jl}, 0')
        for p in range(8):
            e(f'v_dot2_f32_bf16 v{48+jl}, v{d+p}, s30, v{48+jl}')
    k.nop(3)
    for jl in range(4): e(f'v_mov_b32 v{52+jl}, v{48+jl}')
    k.nop(1)
    for jl in range(4): e(f'v_permlane32_swap_b32 v{52+jl}, v{48+jl}')
    k.nop(1)
    for jl in range(4): e(f'v_add_f32 v{48+jl}, v{48+jl}, v{52+jl}')
    e('v_cmp_gt_u32 vcc, 32, v1')
    k.nop(2)
    e('v_cndmask_b32 v52, v50, v48, vcc'); e('v_cndmask_b32 v53, v51, v49, vcc')
    e('s_mul_i32 s24, s16, 112'); e('s_lshl_b32 s26, s17, 4'); e('s_add_u32 s24, s24, s26'); e('s_lshl_b32 s26, s14, 2'); e('s_add_u32 s24, s24, s26')
    e('s_lshl_b32 s24, s24, 7'); e(f's_add_u32 s24, s24, {CSUMP}')
    e('v_and_b32 v5, 31, v1'); e('v_lshlrev_b32 v5, 2, v5'); e('v_lshl_add_u32 v5, v2, 8, v5')
    e('v_add_u32 v5, s24, v5')
    e('global_store_dword v5, v52, s[12:13]')
    e('global_store_dword v5, v53, s[12:13] offset:128')

def emit_prepack_dn(k, pid_sgpr):
    e = k.e
    e(f's_load_dwordx2 s[4:5], s[0:1], {KA["wdn"]}')
    e(f's_lshl_b32 s16, {pid_sgpr}, 15'); e('s_lshl_b32 s25, s14, 13'); e('s_add_u32 s16, s16, s25')
    e('v_lshlrev_b32 v6, 4, v1')
    e('v_add_u32 v3, s16, v6'); e('v_add_u32 v7, 4096, v3')
    e('s_waitcnt lgkmcnt(0)')
    for n in range(8):
        e(f's_add_u32 m0, s25, {(n>>2)*4096}'); e('s_nop 0')
        e(f'global_load_lds_dwordx4 v{3 if n < 4 else 7}, s[4:5] offset:{(n&3)*1024}')
    e('v_lshrrev_b32 v2, 5, v1')
    e('v_lshlrev_b32 v4, 12, v2')
    e('v_bfe_u32 v5, v1, 2, 2'); e('v_lshl_add_u32 v4, v5, 10, v4')
    e('v_bfe_u32 v5, v1, 4, 1'); e('v_lshl_add_u32 v4, v5, 4, v4')
    e('v_and_b32 v5, 1, v1'); e('v_lshl_add_u32 v4, v5, 5, v4')
    e('v_bfe_u32 v5, v1, 1, 1'); e('v_lshl_add_u32 v4, v5, 3, v4')
    e('s_lshl_b32 s24, s14, 8')
    e('v_add_u32 v4, s24, v4')
    e('s_waitcnt vmcnt(0)'); e('s_barrier')
    D = 16
    for nbl in range(2):
        for kfl in range(2):
            for mt in range(2):
                d = D + 4 * (4 * nbl + 2 * kfl + mt)
                for t in range(2):
                    e(f'ds_read_b64_tr_b16 v[{d+2*t}:{d+2*t+1}], v4 offset:{kfl*16384 + t*8192 + nbl*128 + mt*64}')
    for nbl in range(2):
        e('s_lshl_b32 s24, s14, 1'); e(f's_add_u32 s24, s24, {nbl}'); e('s_mul_i32 s24, s24, 112')
        e(f's_lshl_b32 s26, {pid_sgpr}, 1'); e('s_add_u32 s24, s24, s26'); e('s_lshl_b32 s24, s24, 11')
        e(f's_add_u32 s24, s24, {WP4}')
        e('s_add_u32 s8, s12, s24'); e('s_addc_u32 s9, s13, 0')
        e(f's_waitcnt lgkmcnt({8 - 8*nbl})')
        for q in range(4):
            d = D + 4 * (4 * nbl + q)
            e(f'global_store_dwordx4 v6, v[{d}:{d+3}], s[8:9] offset:{q*1024}' + WT)

WT = ' sc1'
CODE_BYTES = 24576
def emit_code_prefetch(k, start_label, nbytes, vdst):
    e = k.e
    lab = k.newlabel('pc')
    e('s_getpc_b64 s[40:41]')
    k.label(lab)
    e(f's_add_u32 s40, s40, {start_label}-{lab}')
    e('s_addc_u32 s41, s41, 0')
    e(f'v_lshlrev_b32 v{vdst}, 6, v0')
    n = (nbytes + 16383) // 16384
    for i in range(n):
        if i: e(f'v_add_u32 v{vdst}, 0x4000, v{vdst}')
        e(f'v_min_u32 v{vdst+1}, code_end_marker-{start_label}-4, v{vdst}')
        k.vmem(f'global_load_dword v{vdst+2+i}, v{vdst+1}, s[40:41]', 'pf')

def gen_k1(pre_gu=True, pre_dn=True):
    ngu = NPG if pre_gu else 0; ndn = NPD if pre_dn else 0
    k = Kern('k1_kernel', 256 + ngu + ndn, lds=32768, nvgpr=136)
    e = k.e
    END = '.L_k1_end'; LPG = '.L_k1_pg'; LPD = '.L_k1_pd'
    e(f's_cmp_ge_u32 s2, {256+ngu+ndn}'); e(f's_cbranch_scc1 {END}')
    k.stamp()
    e(f's_load_dwordx2 s[12:13], s[0:1], {KA["ws"]}')
    e('v_and_b32 v1, 63, v0')
    e('v_lshrrev_b32 v2, 6, v0')
    e('s_nop 0')
    e('v_readfirstlane_b32 s14, v2')
    if pre_dn: e(f's_cmp_ge_u32 s2, {256+ngu}'); e(f's_cbranch_scc1 {LPD}')
    if pre_gu: e('s_cmp_ge_u32 s2, 256'); e(f's_cbranch_scc1 {LPG}')
    e(f's_load_dwordx2 s[4:5], s[0:1], {KA["x"]}')
    e('s_lshr_b32 s15, s2, 5'); e('s_bfe_u32 s16, s2, 0x30002'); e('s_lshl_b32 s16, s16, 3'); e('s_add_u32 s15, s15, s16')
    e('s_and_b32 s16, s2, 3')
    e('s_lshl_b32 s17, s16, 3'); e('s_lshl_b32 s18, s14, 1'); e('s_add_u32 s17, s17, s18'); e('s_lshl_b32 s17, s17, 6')
    e('s_add_u32 s17, s17, s15'); e('s_lshl_b32 s17, s17, 10')
    e('v_lshlrev_b32 v3, 4, v1')
    e('v_add_u32 v4, s17, v3'); e('v_add_u32 v5, 0x10000, v4')
    X = 8
    e('s_waitcnt lgkmcnt(0)')
    k.vmem(f'global_load_dwordx4 v[{X}:{X+3}], v4, s[4:5]', 'x0')
    k.vmem(f'global_load_dwordx4 v[{X+4}:{X+7}], v5, s[4:5]', 'x1')
    emit_code_prefetch(k, 'k2_kernel', CODE_BYTES, 128)
    if os.environ.get('TLBW', '1') == '1':
        e(f's_load_dwordx4 s[44:47], s[0:1], {KA["wdn"]}')
        e('v_lshlrev_b32 v132, 16, v0')
        k.vmem('global_load_dword v133, v132, s[12:13]', 'pf')
        e('v_lshlrev_b32 v132, 13, v0')
        e('v_add_u32 v134, 0x1000000, v132')
        k.vmem('global_load_dword v133, v134, s[12:13]', 'pf')
        e('s_waitcnt lgkmcnt(0)')
        k.vmem('global_load_dword v133, v132, s[46:47]', 'pf')
        e('v_min_u32 v132, 0x1bfffc, v132')
        k.vmem('global_load_dword v133, v132, s[44:45]', 'pf')
    k.stamp()
    BA = 16
    AB = 20
    TC = 28
    TS = 44
    SG = 60
    T = 64
    e('v_bfe_u32 v6, v1, 1, 4')
    e('v_and_b32 v7, 1, v1')
    e('v_lshrrev_b32 v2, 5, v1')
    e(f'v_cvt_f32_u32 v{T}, v6'); e(f'v_cvt_f32_u32 v{T+1}, v7'); e(f'v_cvt_f32_u32 v{T+2}, v2')
    e(f'v_fma_f32 v{SG}, v{T+1}, -2.0, 1.0')
    e(f'v_mul_f32 v{T+3}, {f2u(1/16)}, v{T}')
    e(f'v_mul_f32 v{T+4}, {f2u(8.0)}, v{T+2}')
    e(f'v_mul_f32 v{T+4}, v{T+4}, v{T+3}')
    e(f'v_fmac_f32 v{T+4}, {f2u(0.25)}, v{T+1}')
    for j in range(8):
        e(f'v_cos_f32 v{T+8+j}, v{T+4}')
        if j < 7: e(f'v_add_f32 v{T+4}, v{T+4}, v{T+3}')
    e('s_nop 0')
    for p in range(4): e(f'v_cvt_pk_bf16_f32 v{BA+p}, v{T+8+2*p}, v{T+9+2*p}')
    e(f'v_mul_f32 v{T+3}, {f2u(1/512)}, v{T}')
    e(f'v_mul_f32 v{T+5}, v{T+3}, v{SG}')
    e(f'v_mul_f32 v{T+6}, {f2u(5.0)}, v{T+3}'); e(f'v_mul_f32 v{T+7}, {f2u(5.0)}, v{T+5}')
    e(f'v_mul_f32 v{T+4}, 4.0, v{T+2}')
    e(f'v_mul_f32 v{T+8}, v{T+4}, v{T+3}'); e(f'v_mul_f32 v{T+9}, v{T+4}, v{T+5}')
    for r in range(16):
        e(f'v_cos_f32 v{TC+r}, v{T+8}'); e(f'v_sin_f32 v{TS+r}, v{T+9}')
        if r < 15:
            big = (r & 3) == 3
            e(f'v_add_f32 v{T+8}, v{T+8}, v{T+6 if big else T+3}'); e(f'v_add_f32 v{T+9}, v{T+9}, v{T+7 if big else T+5}')
    e('v_and_b32 v6, 15, v1'); e('v_bfe_u32 v7, v1, 4, 1')
    e(f'v_cvt_f32_u32 v{T}, v6'); e(f'v_cvt_f32_u32 v{T+1}, v7')
    e(f'v_mul_f32 v{T+3}, {f2u(1/32)}, v{T}')
    e(f'v_mul_f32 v{T+6}, {f2u(5.0)}, v{T+3}')
    e(f'v_mul_f32 v{T+8}, v{T+4}, v{T+3}')
    e(f'v_fmac_f32 v{T+8}, {f2u(-0.25)}, v{T+1}')
    for r in range(16):
        e(f'v_cos_f32 v{T+10+(r&1)}, v{T+8}')
        if r < 15: e(f'v_add_f32 v{T+8}, v{T+8}, v{T+6 if (r&3)==3 else T+3}')
        else: e('s_nop 0')
        if r & 1: e(f'v_cvt_pk_bf16_f32 v{AB+(r>>1)}, v{T+10}, v{T+11}')
    e('s_lshl_b32 s18, s14, 11')
    e('v_add_u32 v4, s18, v3')
    e('v_lshlrev_b32 v5, 9, v2')
    e('v_bfe_u32 v6, v1, 2, 2'); e('v_lshl_add_u32 v5, v6, 6, v5')
    e('v_bfe_u32 v6, v1, 4, 1'); e('v_lshl_add_u32 v5, v6, 5, v5')
    e('v_and_b32 v6, 3, v1'); e('v_lshl_add_u32 v5, v6, 3, v5')
    e('v_add_u32 v5, s18, v5')
    e('s_mov_b32 s30, 0xffff0000')
    k.stamp()
    AF = 61
    FA = 96
    DA = 64
    for u in range(2):
        k.wait(vm=f'x{u}')
        k.ds(f'ds_write_b128 v4, v[{X+4*u}:{X+4*u+3}] offset:{u*1024}', f'w{u}')
    k.stamp()
    for u in range(2):
        k.wait(lg=f'w{u}')
        for t in range(2):
            k.ds(f'ds_read_b64_tr_b16 v[{FA+4*u+2*t}:{FA+4*u+2*t+1}], v5 offset:{u*1024+t*256}', f'a{u}')
    ST = 104
    for u in range(2):
        s = ST + 4 * u; U = 112
        for i in range(4):
            e(f'v_lshlrev_b32 v{U+2*i}, 16, v{X+4*u+i}'); e(f'v_and_b32 v{U+2*i+1}, s30, v{X+4*u+i}')
        e(f'v_add_f32 v{s}, v{U}, v{U+2}'); e(f'v_add_f32 v{s+1}, v{U+1}, v{U+3}')
        e(f'v_mul_f32 v{s+2}, v{U}, v{U}'); e(f'v_mul_f32 v{s+3}, v{U+1}, v{U+1}')
        for i in range(2, 4):
            e(f'v_add_f32 v{s}, v{s}, v{U+2*i}'); e(f'v_add_f32 v{s+1}, v{s+1}, v{U+2*i+1}')
        for i in range(1, 4):
            e(f'v_fmac_f32 v{s+2}, v{U+2*i}, v{U+2*i}'); e(f'v_fmac_f32 v{s+3}, v{U+2*i+1}, v{U+2*i+1}')
        e(f'v_add_f32 v{s+2}, v{s+2}, v{s+3}')
        k.wait(lg=f'a{u}')
        e(f'v_mfma_f32_32x32x16_bf16 v[{DA+16*u}:{DA+16*u+15}], v[{FA+4*u}:{FA+4*u+3}], v[{BA}:{BA+3}], 0')
    chains = [ST, ST + 1, ST + 2, ST + 4, ST + 5, ST + 6]
    for mod in ('row_shr:1', 'row_shr:2', 'row_shr:4', 'row_shr:8', 'row_bcast:15 row_mask:0xa', 'row_bcast:31 row_mask:0xc'):
        for c in chains:
            m = mod if 'row_mask' in mod else mod + ' row_mask:0xf'
            e(f'v_add_f32_dpp v{c}, v{c}, v{c} {m} bank_mask:0xf' + (' bound_ctrl:0' if 'shr' in mod else ''))
    e('s_nop 0')
    for i, c in enumerate(chains): e(f'v_readlane_b32 s{32+i}, v{c}, 63')
    GP = 96
    for u in range(2):
        d = DA + 16 * u
        for r in range(16):
            e(f'v_mul_f32 v{112+r}, v{TC+r}, v{d+r}')
        for r in range(16):
            e(f'v_fmac_f32_dpp v{112+r}, v{d+r}, v{TS+r} {DPPX}')
        for p in range(8):
            e(f'v_cvt_pk_bf16_f32 v{GP+8*u+p}, v{112+2*p}, v{113+2*p}')
        k.nop(2)
        for ks in range(2):
            cin = '0' if ks == 0 else f'v[{d}:{d+15}]'
            e(f'v_mfma_f32_32x32x16_bf16 v[{d}:{d+15}], v[{AB+4*ks}:{AB+4*ks+3}], v[{GP+8*u+4*ks}:{GP+8*u+4*ks+3}], {cin}')
    for u in range(2):
        a, b, qv = 32 + 3 * u, 33 + 3 * u, 34 + 3 * u
        e(f'v_mov_b32 v12, s{a}')
        e(f'v_add_f32 v13, s{b}, v12')
        e(f'v_subrev_f32 v14, s{b}, v12')
        e('v_mul_f32 v13, 0x3b000000, v13')
        e(f'v_mov_b32 v15, s{qv}')
        e('v_mul_f32 v15, 0x3b000000, v15')
        e('v_fma_f32 v15, -v13, v13, v15')
        e('v_max_f32 v15, 0, v15')
        e('v_add_f32 v15, 0x3727c5ac, v15')
        e(f'v_rsq_f32 v{8+u}, v15')
        e(f'v_max_f32 v12, 0, v{SG}')
        e('v_mul_f32 v14, v14, v12')
        e(f'v_mul_f32 v{10+u}, v14, v{8+u}')
    e('v_cmp_gt_u32 vcc, 2, v1')
    e('s_lshl_b32 s18, s14, 2'); e('s_add_u32 s18, s18, 8192')
    e('v_add_u32 v4, s18, v3')
    for u in range(2):
        d = DA + 16 * u
        for r in range(8):
            e(f'v_fmac_f32_dpp v{d+r}, v{d+8+r}, v{SG} {DPPX}')
        for r in range(8):
            e(f'v_mul_f32 v{d+r}, v{d+r}, v{8+u}')
        e(f'v_cndmask_b32 v{d}, v{d}, v{10+u}, vcc')
    for r in range(8):
        e(f'v_cvt_pk_bf16_f32 v{112+r}, v{DA+r}, v{DA+16+r}')
        e(f'ds_write_b32 v4, v{112+r} offset:{r*1024}')
    e('v_bfe_u32 v6, v1, 1, 4')
    e('v_lshl_add_u32 v6, v2, 6, v6')
    e('s_lshl_b32 s18, s14, 4'); e('s_sub_u32 s18, s18, 1')
    e('v_add_u32 v6, s18, v6')
    e('v_add_u32 v7, 128, v6')
    e('v_and_b32 v6, 255, v6')
    e('s_lshr_b32 s18, s15, 4'); e('s_lshl_b32 s18, s18, 13'); e('s_lshl_b32 s19, s16, 8'); e('s_add_u32 s18, s18, s19')
    e('s_and_b32 s19, s15, 15'); e('s_lshl_b32 s19, s19, 4'); e('s_add_u32 s18, s18, s19')
    if CBUF: e(f's_add_u32 s18, s18, {CBUF}')
    e('v_and_b32 v12, 1, v1'); e('v_lshlrev_b32 v12, 10, v12'); e('v_add_u32 v12, s18, v12')
    for i in range(2):
        e(f'v_lshrrev_b32 v13, 2, v{6+i}'); e('v_lshl_add_u32 v13, v13, 15, v12')
        e(f'v_and_b32 v14, 3, v{6+i}'); e(f'v_lshl_add_u32 v{6+i}, v14, 11, v13')
    e('v_lshlrev_b32 v5, 4, v0')
    e('v_and_b32 v12, 7, v0'); e('v_lshrrev_b32 v13, 3, v0')
    e('v_lshlrev_b32 v8, 10, v12'); e('v_lshl_add_u32 v8, v13, 3, v8')
    e('v_add_u32 v9, 8, v8')
    e('v_add_u32 v10, 264, v8')
    e('v_lshlrev_b32 v14, 10, v12')
    e('v_cmp_eq_u32 vcc, 31, v13')
    e('v_lshlrev_b32 v11, 3, v13'); e('v_sub_u32 v11, 760, v11'); e('v_add_u32 v11, v11, v14')
    e('v_cndmask_b32 v10, v10, v14, vcc')
    e('s_lshl_b32 s18, s15, 15'); e('s_lshl_b32 s19, s16, 7'); e('s_add_u32 s18, s18, s19'); e(f's_add_u32 s18, s18, {HBUF}')
    e('v_lshlrev_b32 v15, 9, v13'); e('v_lshl_add_u32 v15, v12, 4, v15'); e('v_add_u32 v15, s18, v15')
    e('v_add_u32 v14, 0x4000, v15')
    e('s_waitcnt lgkmcnt(0)'); e('s_barrier')
    k.stamp()
    e('ds_read_b128 v[16:19], v5 offset:8192'); e('ds_read_b128 v[20:23], v5 offset:12288')
    for i in range(2):
        e(f'ds_read_b64 v[{24+8*i}:{25+8*i}], v8 offset:{256*i}')
        e(f'ds_read_b32 v{26+8*i}, v{9+i}')
        e(f'ds_read_b64 v[{30+8*i}:{31+8*i}], v11 offset:{256*(1-i)}')
    e('s_waitcnt lgkmcnt(7)')
    e('global_store_dwordx4 v6, v[16:19], s[12:13]')
    e('s_waitcnt lgkmcnt(6)')
    e('global_store_dwordx4 v7, v[20:23], s[12:13]')
    for i in range(2):
        e(f's_waitcnt lgkmcnt({3-3*i})')
        e(f'v_alignbit_b32 v{28+8*i}, v{25+8*i}, v{24+8*i}, 16')
        e(f'v_alignbit_b32 v{29+8*i}, v{26+8*i}, v{25+8*i}, 16')
        e(f'global_store_dwordx4 v15, v[{28+8*i}:{31+8*i}], s[12:13] offset:0' if i == 0 else f'global_store_dwordx4 v14, v[{28+8*i}:{31+8*i}], s[12:13]')
    k.stamp_flush(0)
    e('s_endpgm')
    if pre_gu:
        k.label(LPG); k.nst = 1; k.vm = []; k.lg = []
        e('s_sub_u32 s15, s2, 256')
        emit_prepack_gu(k, 's15')
        k.stamp_flush(0)
        e('s_endpgm')
    if pre_dn:
        k.label(LPD); k.nst = 1; k.vm = []; k.lg = []
        e(f's_sub_u32 s15, s2, {256+ngu}')
        emit_prepack_dn(k, 's15')
        k.stamp_flush(0)
    k.label(END)
    e('s_endpgm')
    return k
```

```python
import sys
sys.path.insert(0, 'dev')
from asmlib import *
from gen import *
import os
EXP = os.environ.get('EXP', '')

def gen_k3(KC=2, NS=6, PF=7, R=8):
    NSTG = 32 // KC
    WB = KC * 7 * 1024; TB = KC * 4 * 1024; SB = WB + TB
    TBL = NS * SB
    k = Kern('k3_kernel', 256, block=512, lds=TBL + 896, nvgpr=200)
    e = k.e
    END = '.L_k3_end'; LPROD = '.L_k3_prod'
    e('s_cmp_ge_u32 s2, 256'); e(f's_cbranch_scc1 {END}')
    k.stamp()
    e(f's_load_dwordx2 s[12:13], s[0:1], {KA["ws"]}')
    e('v_and_b32 v9, 63, v0')
    e('v_lshrrev_b32 v10, 6, v0')
    e('v_lshlrev_b32 v1, 4, v9')
    e('v_readfirstlane_b32 s14, v10')
    e('s_and_b32 s15, s2, 7'); e('s_lshr_b32 s16, s2, 3')
    e('s_and_b32 s17, s15, 1'); e('s_lshl_b32 s17, s17, 3'); e('s_and_b32 s18, s16, 7'); e('s_add_u32 s17, s17, s18')
    e('s_lshr_b32 s18, s15, 1'); e('s_lshl_b32 s18, s18, 2'); e('s_lshr_b32 s19, s16, 3'); e('s_add_u32 s18, s18, s19')
    e('s_and_b32 s24, s14, 3')
    e('s_lshl_b32 s17, s17, 2'); e('s_add_u32 s17, s17, s24')
    e('s_cmp_ge_u32 s14, 4'); e(f's_cbranch_scc1 {LPROD}')
    ACC = 16; WR = 128; TR = WR + 4 * R; NT = 4
    U = TR + 4 * NT
    nbase = (TBL + 57343) // 57344
    for b in range(nbase):
        e(f'v_add_u32 v{2+b}, {57344*b}, v1' if b else 'v_mov_b32 v2, v1')
    e('s_lshl_b32 s20, s24, 10')
    for b in range(nbase):
        e(f'v_add_u32 v{10+b}, s20, v{2+b}')
    for i in range(112): e(f'v_mov_b32 v{ACC+i}, 0')
    for i in range(5, 9): e(f'v_mov_b32 v{i}, 0')
    e('s_mov_b32 s30, 0xffff0000')
    NST = 224; SPS = 7 * KC
    def rd(s):
        c, rem = divmod(s, SPS)
        ks, j = divmod(rem, 7)
        if j == 0:
            kk = c * KC + ks
            addr = (c % NS) * SB + WB + ks * 4096
            b, off = divmod(addr, 57344)
            assert off + 4096 <= 65536
            t = TR + 4 * (kk % NT)
            k.ds(f'ds_read_b128 v[{t}:{t+3}], v{10+b} offset:{off}', f'f{s}')
        addr = (c % NS) * SB + rem * 1024
        b, off = divmod(addr, 57344)
        a = WR + 4 * (s % R)
        k.ds(f'ds_read_b128 v[{a}:{a+3}], v{2+b} offset:{off}', f'f{s}')
    k.stamp()
    e('s_barrier')
    k.stamp()
    for s in range(PF): rd(s)
    pend = []
    for s in range(NST):
        c, rem = divmod(s, SPS); ks, j = divmod(rem, 7); kk = c * KC + ks
        k.wait(lg=f'f{s}')
        a = WR + 4 * (s % R); t = TR + 4 * (kk % NT)
        if 'nomfma' not in EXP: e(f'v_mfma_f32_32x32x16_bf16 v[{ACC+16*j}:{ACC+16*j+15}], v[{a}:{a+3}], v[{t}:{t+3}], v[{ACC+16*j}:{ACC+16*j+15}]')
        if 'mfma16' in EXP:
            e(f'v_mfma_f32_16x16x32_bf16 v[{ACC+16*j}:{ACC+16*j+3}], v[{a}:{a+3}], v[{t}:{t+3}], v[{ACC+16*j}:{ACC+16*j+3}]')
            e(f'v_mfma_f32_16x16x32_bf16 v[{ACC+16*j+4}:{ACC+16*j+7}], v[{a}:{a+3}], v[{t}:{t+3}], v[{ACC+16*j+4}:{ACC+16*j+7}]')
        nxt = s + PF
        if nxt < NST:
            if nxt % SPS == 0:
                e('s_barrier')
                if (nxt // SPS) % 4 == 0: k.stamp()
            rd(nxt)
        if j == 0:
            for i in range(4):
                lo = U + 2 * i; hi = lo + 1
                pend += [f'v_lshlrev_b32 v{lo}, 16, v{t+i}', f'v_and_b32 v{hi}, s30, v{t+i}']
            for i in range(4):
                lo = U + 2 * i; hi = lo + 1
                pend += [f'v_add_f32 v5, v5, v{lo}', f'v_add_f32 v6, v6, v{hi}', f'v_fmac_f32 v7, v{lo}, v{lo}', f'v_fmac_f32 v8, v{hi}, v{hi}']
        n = 4 if j < 3 else 3
        for _ in range(n):
            if pend:
                x = pend.pop(0)
                if 'nostats' not in EXP: e(x)
    assert not pend
    k.stamp()
    e('v_add_f32 v5, v5, v6'); e('v_add_f32 v7, v7, v8')
    e('v_mov_b32 v6, v5'); e('v_mov_b32 v8, v7')
    k.nop(1)
    e('v_permlane32_swap_b32 v6, v5'); e('v_permlane32_swap_b32 v8, v7')
    k.nop(1)
    e('v_add_f32 v5, v5, v6'); e('v_add_f32 v7, v7, v8')
    e('v_mul_f32 v5, 0xbb000000, v5')
    e('v_mul_f32 v7, 0x3b000000, v7')
    e('v_fma_f32 v7, -v5, v5, v7')
    e('v_max_f32 v7, 0, v7')
    e('v_add_f32 v7, 0x3727c5ac, v7')
    e('v_rsq_f32 v8, v7')
    e('v_mov_b32 v10, v5')
    e('v_lshrrev_b32 v9, 5, v0'); e('v_and_b32 v9, 1, v9'); e('v_lshlrev_b32 v9, 6, v9')
    e(f'v_add_u32 v9, {TBL}, v9')
    e('v_mul_f32 v12, 0xbfb8aa3b, v8')
    e('s_mul_i32 s22, s17, 112'); e('s_mul_i32 s23, s18, 7'); e('s_add_u32 s22, s22, s23'); e('s_lshl_b32 s22, s22, 10')
    e(f's_add_u32 s22, s22, {HHBUF}')
    e('s_add_u32 s12, s12, s22'); e('s_addc_u32 s13, s13, 0')
    e('v_add_u32 v2, 4096, v1')
    CS = 128
    O = 176
    def rdt(j):
        for q in range(4):
            cc = CS + 16 * (j % 3) + 4 * q
            k.ds(f'ds_read_b128 v[{cc}:{cc+3}], v9 offset:{j*128+q*16}', f't{j}')
    rdt(0); rdt(1); rdt(2)
    for j in range(7):
        k.wait(lg=f't{j}')
        A = ACC + 16 * j; C = CS + 16 * (j % 3)
        for p in range(4):
            e(f'v_pk_fma_f32 v[{A+2*p}:{A+2*p+1}], v[{C+2*p}:{C+2*p+1}], v[10:11], v[{A+2*p}:{A+2*p+1}] op_sel_hi:[1,0,1]')
        for p in range(4):
            e(f'v_pk_fma_f32 v[{A+8+2*p}:{A+9+2*p}], v[{C+8+2*p}:{C+9+2*p}], v[10:11], v[{A+8+2*p}:{A+9+2*p}] op_sel_hi:[1,0,1]')
        if j + 3 < 7: rdt(j + 3)
        for p in range(4):
            e(f'v_pk_mul_f32 v[{A+2*p}:{A+2*p+1}], v[{A+2*p}:{A+2*p+1}], v[12:13] op_sel_hi:[1,0]')
        for r in range(8):
            e(f'v_exp_f32 v{A+r}, v{A+r}')
        for p in range(4):
            e(f'v_pk_mul_f32 v[{A+8+2*p}:{A+9+2*p}], v[{A+8+2*p}:{A+9+2*p}], v[8:9] op_sel_hi:[1,0]')
        for r in range(8):
            e(f'v_add_f32 v{A+r}, 1.0, v{A+r}')
        for r in range(8):
            e(f'v_rcp_f32 v{A+r}, v{A+r}')
        e('s_nop 0')
        for p in range(4):
            e(f'v_pk_mul_f32 v[{A+2*p}:{A+2*p+1}], v[{A+2*p}:{A+2*p+1}], v[{A+8+2*p}:{A+9+2*p}]')
        o = O + 4 * (j & 1)
        for p in range(4):
            e(f'v_cvt_pk_bf16_f32 v{o+p}, v{A+2*p}, v{A+2*p+1}')
        e(f'global_store_dwordx4 v{1 if j < 4 else 2}, v[{o}:{o+3}], s[12:13] offset:{(j&3)*1024} sc1')
    k.stamp_flush(2, 's24')
    e('s_endpgm')
    k.label(LPROD)
    k.vm = []; k.lg = []
    e('s_lshl_b32 s19, s17, 15'); e(f's_add_u32 s19, s19, {HBUF}')
    e('s_mul_i32 s20, s18, 229376'); e(f's_add_u32 s20, s20, {WP3}')
    if 'k3same' in EXP:
        e('s_lshl_b32 s19, s24, 15'); e(f's_add_u32 s19, s19, {HBUF}'); e(f's_mov_b32 s20, {WP3}')
    e('s_lshl_b32 s21, s24, 10')
    e('s_add_u32 s20, s20, s21')
    e('s_waitcnt lgkmcnt(0)')
    e('s_add_u32 s4, s12, s19'); e('s_addc_u32 s5, s13, 0')
    e('s_add_u32 s6, s12, s20'); e('s_addc_u32 s7, s13, 0')
    e(f's_add_u32 s8, s12, {CSUMP}'); e('s_addc_u32 s9, s13, 0')
    NW = 7 * KC
    nfull = NW // 4; rem = NW % 4
    def issue_stage(c):
        base = (c % NS) * SB
        for ks in range(KC):
            e(f's_add_u32 m0, s21, {base + WB + ks*4096}')
            e('s_nop 0')
            k.vmem('global_load_lds_dwordx4 v1, s[4:5]', f'c{c}')
            add64(k, 4, 1024)
        for n in range(nfull):
            e(f's_add_u32 m0, s21, {base + n*4096}')
            e('s_nop 0')
            k.vmem('global_load_lds_dwordx4 v1, s[6:7]', f'c{c}')
            add64(k, 6, 4096)
        if rem:
            e(f's_add_u32 m0, s26, {base + nfull*4096}')
            e('s_nop 0')
            k.vmem('global_load_lds_dwordx4 v1, s[10:11]', f'c{c}')
            add64(k, 6, WB - nfull * 4096)
            add64(k, 10, WB)
    if rem:
        e(f's_min_u32 s25, s24, {rem-1}'); e('s_lshl_b32 s26, s25, 10')
        e('s_sub_u32 s25, s20, s21'); e('s_add_u32 s25, s25, s26'); e(f's_add_u32 s25, s25, {nfull*4096}')
        e('s_add_u32 s10, s12, s25'); e('s_addc_u32 s11, s13, 0')
    return k, e, issue_stage, NSTG, NS, TBL, END

def gen_k3_full(**kw):
    k, e, issue_stage, NSTG, NS, TBL, END = gen_k3(**kw)
    issued = 0
    for c in range(2):
        issue_stage(c); issued += 1
        if c == 1:
            e('v_subrev_u32 v10, 256, v0')
            e('v_lshrrev_b32 v11, 5, v10'); e('v_min_u32 v11, 6, v11')
            e('v_and_b32 v12, 31, v10')
            e('v_lshl_add_u32 v13, v11, 5, v12')
            e('s_mul_i32 s22, s18, 224')
            e('v_add_u32 v13, s22, v13')
            e('v_lshlrev_b32 v13, 2, v13')
            e('v_bfe_u32 v14, v12, 2, 1')
            e('v_lshl_add_u32 v14, v11, 1, v14')
            e('v_lshlrev_b32 v14, 4, v14')
            e('v_and_b32 v15, 3, v12'); e('v_add_u32 v14, v14, v15')
            e('v_lshrrev_b32 v15, 3, v12'); e('v_lshl_add_u32 v14, v15, 2, v14')
            e('v_lshlrev_b32 v14, 2, v14')
            e(f'v_add_u32 v15, {TBL}, v14')
            for g in range(16):
                k.vmem(f'global_load_dword v{16+g}, v13, s[8:9]', 'cs')
                if g < 15: add64(k, 8, 14336)
    for c in range(NSTG):
        k.wait(vm=f'c{c}')
        if c == 3:
            k.wait(vm='cs')
            for g in range(1, 16): e(f'v_add_f32 v16, v16, v{16+g}')
            e('ds_write_b32 v15, v16'); e('s_waitcnt lgkmcnt(0)')
        e('s_barrier')
        n = 0
        while issued < NSTG and issued <= c + NS - 2 and n < 2:
            issue_stage(issued); issued += 1; n += 1
    k.label(END)
    e('s_endpgm')
    return k
```

```python
import sys
sys.path.insert(0, 'dev')
from asmlib import *
from gen import *
import os

NPG, NPD = 112, 56
DPPX = 'quad_perm:[1,0,3,2] row_mask:0xf bank_mask:0xf'

def emit_prepack_gu(k, pid_sgpr):
    e = k.e
    e(f's_load_dwordx4 s[4:7], s[0:1], {KA["wg"]}')
    e(f's_mul_i32 s16, {pid_sgpr}, 9363'); e('s_lshr_b32 s16, s16, 16')
    e('s_mul_i32 s17, s16, 7'); e(f's_sub_u32 s17, {pid_sgpr}, s17')
    e('s_lshr_b32 s18, s14, 1')
    e('s_and_b32 s19, s14, 1')
    e('v_lshrrev_b32 v2, 5, v1')
    e('v_and_b32 v3, 31, v1')
    e('v_lshlrev_b32 v3, 4, v3')
    e('s_lshl_b32 s20, s17, 9')
    e('v_add_u32 v3, s20, v3')
    e('s_lshl_b32 s21, s16, 2'); e('s_lshl_b32 s22, s19, 1'); e('s_add_u32 s21, s21, s22')
    e('s_lshl_b32 s21, s21, 2')
    e('s_movk_i32 s23, 3584')
    for n in range(8):
        g = n >> 2; i0 = (2 * n) & 7
        if i0 < 4:
            e(f's_add_u32 s24, s21, {4*g + 1 + i0}')
            e('v_add_u32 v4, s24, v2'); e('v_and_b32 v4, 255, v4')
        else:
            e(f's_sub_u32 s24, {508 - 4*g + i0 - 4}, s21')
            e('v_add_u32 v4, s24, v2')
        e(f'v_mad_u32_u24 v{8+n}, v4, s23, v3')
    e('s_lshl_b32 s25, s14, 13')
    e('s_waitcnt lgkmcnt(0)')
    e('s_cmp_eq_u32 s18, 0')
    e('s_cselect_b32 s4, s4, s6'); e('s_cselect_b32 s5, s5, s7')
    for n in range(8):
        e(f's_add_u32 m0, s25, {n*1024}'); e('s_nop 0')
        e(f'global_load_lds_dwordx4 v{8+n}, s[4:5]')
    e('v_bfe_u32 v4, v1, 4, 1'); e('v_lshlrev_b32 v4, 14, v4')
    e('v_lshl_add_u32 v4, v2, 12, v4')
    e('v_bfe_u32 v5, v1, 2, 2'); e('v_lshl_add_u32 v4, v5, 9, v4')
    e('v_and_b32 v5, 3, v1'); e('v_lshl_add_u32 v4, v5, 3, v4')
    e('s_lshl_b32 s24, s14, 7')
    e('v_add_u32 v4, s24, v4')
    e('v_lshlrev_b32 v6, 4, v1')
    e(f's_mov_b32 s30, {ONES}')
    e('s_waitcnt vmcnt(0)'); e('s_barrier')
    D = 16
    for jl in range(4):
        for kkl in range(2):
            d = D + 4 * (2 * jl + kkl)
            for t in range(2):
                e(f'ds_read_b64_tr_b16 v[{d+2*t}:{d+2*t+1}], v4 offset:{kkl*8192 + t*2048 + jl*32}')
    for jl in range(4):
        e('s_lshl_b32 s24, s17, 4'); e('s_lshl_b32 s26, s14, 2'); e('s_add_u32 s24, s24, s26'); e(f's_add_u32 s24, s24, {jl}')
        e('s_mul_i32 s26, s24, 9363'); e('s_lshr_b32 s26, s26, 16')
        e('s_mul_i32 s27, s26, 7'); e('s_sub_u32 s27, s24, s27')
        e('s_lshl_b32 s26, s26, 5'); e('s_lshl_b32 s28, s16, 1'); e('s_add_u32 s26, s26, s28')
        e('s_mul_i32 s26, s26, 7'); e('s_add_u32 s26, s26, s27'); e('s_lshl_b32 s26, s26, 10')
        e(f's_add_u32 s26, s26, {WP3}')
        e('s_add_u32 s8, s12, s26'); e('s_addc_u32 s9, s13, 0')
        e(f's_add_u32 s10, s8, 7168'); e('s_addc_u32 s11, s9, 0')
        e(f's_waitcnt lgkmcnt({12 - 4*jl})')
        d = D + 8 * jl
        e(f'global_store_dwordx4 v6, v[{d}:{d+3}], s[8:9]' + WT)
        e(f'global_store_dwordx4 v6, v[{d+4}:{d+7}], s[10:11]' + WT)
        e(f'v_mov_b32 v{48+jl}, 0')
        for p in range(8):
            e(f'v_dot2_f32_bf16 v{48+jl}, v{d+p}, s30, v{48+jl}')
    k.nop(3)
    for jl in range(4): e(f'v_mov_b32 v{52+jl}, v{48+jl}')
    k.nop(1)
    for jl in range(4): e(f'v_permlane32_swap_b32 v{52+jl}, v{48+jl}')
    k.nop(1)
    for jl in range(4): e(f'v_add_f32 v{48+jl}, v{48+jl}, v{52+jl}')
    e('v_cmp_gt_u32 vcc, 32, v1')
    k.nop(2)
    e('v_cndmask_b32 v52, v50, v48, vcc'); e('v_cndmask_b32 v53, v51, v49, vcc')
    e('s_mul_i32 s24, s16, 112'); e('s_lshl_b32 s26, s17, 4'); e('s_add_u32 s24, s24, s26'); e('s_lshl_b32 s26, s14, 2'); e('s_add_u32 s24, s24, s26')
    e('s_lshl_b32 s24, s24, 7'); e(f's_add_u32 s24, s24, {CSUMP}')
    e('v_and_b32 v5, 31, v1'); e('v_lshlrev_b32 v5, 2, v5'); e('v_lshl_add_u32 v5, v2, 8, v5')
    e('v_add_u32 v5, s24, v5')
    e('global_store_dword v5, v52, s[12:13]')
    e('global_store_dword v5, v53, s[12:13] offset:128')

def emit_prepack_dn(k, pid_sgpr):
    e = k.e
    e(f's_load_dwordx2 s[4:5], s[0:1], {KA["wdn"]}')
    e(f's_lshl_b32 s16, {pid_sgpr}, 15'); e('s_lshl_b32 s25, s14, 13'); e('s_add_u32 s16, s16, s25')
    e('v_lshlrev_b32 v6, 4, v1')
    e('v_add_u32 v3, s16, v6'); e('v_add_u32 v7, 4096, v3')
    e('s_waitcnt lgkmcnt(0)')
    for n in range(8):
        e(f's_add_u32 m0, s25, {(n>>2)*4096}'); e('s_nop 0')
        e(f'global_load_lds_dwordx4 v{3 if n < 4 else 7}, s[4:5] offset:{(n&3)*1024}')
    e('v_lshrrev_b32 v2, 5, v1')
    e('v_lshlrev_b32 v4, 12, v2')
    e('v_bfe_u32 v5, v1, 2, 2'); e('v_lshl_add_u32 v4, v5, 10, v4')
    e('v_bfe_u32 v5, v1, 4, 1'); e('v_lshl_add_u32 v4, v5, 4, v4')
    e('v_and_b32 v5, 1, v1'); e('v_lshl_add_u32 v4, v5, 5, v4')
    e('v_bfe_u32 v5, v1, 1, 1'); e('v_lshl_add_u32 v4, v5, 3, v4')
    e('s_lshl_b32 s24, s14, 8')
    e('v_add_u32 v4, s24, v4')
    e('s_waitcnt vmcnt(0)'); e('s_barrier')
    D = 16
    for nbl in range(2):
        for kfl in range(2):
            for mt in range(2):
                d = D + 4 * (4 * nbl + 2 * kfl + mt)
                for t in range(2):
                    e(f'ds_read_b64_tr_b16 v[{d+2*t}:{d+2*t+1}], v4 offset:{kfl*16384 + t*8192 + nbl*128 + mt*64}')
    for nbl in range(2):
        e('s_lshl_b32 s24, s14, 1'); e(f's_add_u32 s24, s24, {nbl}'); e('s_mul_i32 s24, s24, 112')
        e(f's_lshl_b32 s26, {pid_sgpr}, 1'); e('s_add_u32 s24, s24, s26'); e('s_lshl_b32 s24, s24, 11')
        e(f's_add_u32 s24, s24, {WP4}')
        e('s_add_u32 s8, s12, s24'); e('s_addc_u32 s9, s13, 0')
        e(f's_waitcnt lgkmcnt({8 - 8*nbl})')
        for q in range(4):
            d = D + 4 * (4 * nbl + q)
            e(f'global_store_dwordx4 v6, v[{d}:{d+3}], s[8:9] offset:{q*1024}' + WT)

WT = ' sc1'
CODE_BYTES = 24576
def emit_code_prefetch(k, start_label, nbytes, vdst):
    e = k.e
    lab = k.newlabel('pc')
    e('s_getpc_b64 s[40:41]')
    k.label(lab)
    if os.environ.get('PCDUMP'):
        e(f's_sub_u32 s42, s40, {lab}-k1_kernel'); e('s_subb_u32 s43, s41, 0')
        e(f'v_mov_b32 v{vdst}, 0x3000000'); e(f'v_mov_b32 v{vdst+2}, s42'); e(f'v_mov_b32 v{vdst+3}, s43')
        e(f'global_store_dwordx2 v{vdst}, v[{vdst+2}:{vdst+3}], s[12:13]')
        e('s_waitcnt vmcnt(0)')
    e(f's_add_u32 s40, s40, {start_label}-{lab}')
    e('s_addc_u32 s41, s41, 0')
    e(f'v_lshlrev_b32 v{vdst}, 6, v0')
    n = (nbytes + 16383) // 16384
    for i in range(n):
        if i: e(f'v_add_u32 v{vdst}, 0x4000, v{vdst}')
        e(f'v_min_u32 v{vdst+1}, code_end_marker-{start_label}-4, v{vdst}')
        k.vmem(f'global_load_dword v{vdst+2+i}, v{vdst+1}, s[40:41]', 'pf')

def gen_k1(pre_gu=True, pre_dn=True):
    ngu = NPG if pre_gu else 0; ndn = NPD if pre_dn else 0
    k = Kern('k1_kernel', 256 + ngu + ndn, lds=32768, nvgpr=136)
    e = k.e
    END = '.L_k1_end'; LPG = '.L_k1_pg'; LPD = '.L_k1_pd'
    e(f's_cmp_ge_u32 s2, {256+ngu+ndn}'); e(f's_cbranch_scc1 {END}')
    k.stamp()
    e(f's_load_dwordx2 s[12:13], s[0:1], {KA["ws"]}')
    e('v_and_b32 v1, 63, v0')
    e('v_lshrrev_b32 v2, 6, v0')
    e('s_nop 0')
    e('v_readfirstlane_b32 s14, v2')
    if pre_dn: e(f's_cmp_ge_u32 s2, {256+ngu}'); e(f's_cbranch_scc1 {LPD}')
    if pre_gu: e('s_cmp_ge_u32 s2, 256'); e(f's_cbranch_scc1 {LPG}')
    e(f's_load_dwordx2 s[4:5], s[0:1], {KA["x"]}')
    e('s_lshr_b32 s15, s2, 5'); e('s_bfe_u32 s16, s2, 0x30002'); e('s_lshl_b32 s16, s16, 3'); e('s_add_u32 s15, s15, s16')
    e('s_and_b32 s16, s2, 3')
    e('s_lshl_b32 s17, s16, 3'); e('s_lshl_b32 s18, s14, 1'); e('s_add_u32 s17, s17, s18'); e('s_lshl_b32 s17, s17, 6')
    e('s_add_u32 s17, s17, s15'); e('s_lshl_b32 s17, s17, 10')
    e('v_lshlrev_b32 v3, 4, v1')
    e('v_add_u32 v4, s17, v3'); e('v_add_u32 v5, 0x10000, v4')
    X = 8
    e('s_waitcnt lgkmcnt(0)')
    k.vmem(f'global_load_dwordx4 v[{X}:{X+3}], v4, s[4:5]', 'x0')
    k.vmem(f'global_load_dwordx4 v[{X+4}:{X+7}], v5, s[4:5]', 'x1')
    emit_code_prefetch(k, 'k2_kernel', CODE_BYTES, 128)
    lz = k.newlabel('zc')
    e('s_cmp_lg_u32 s2, 0'); e(f's_cbranch_scc1 {lz}')
    e('v_lshlrev_b32 v132, 6, v0'); e(f'v_add_u32 v132, {CNT}, v132'); e('v_mov_b32 v133, 0')
    e('global_store_dword v132, v133, s[12:13]')
    e('s_waitcnt vmcnt(0)')
    k.label(lz)
    if os.environ.get('TLBW', '0') == '1':
        e(f's_load_dwordx4 s[44:47], s[0:1], {KA["wdn"]}')
        e('v_lshlrev_b32 v132, 16, v0')
        k.vmem('global_load_dword v133, v132, s[12:13]', 'pf')
        e('v_lshlrev_b32 v132, 13, v0')
        e('v_add_u32 v134, 0x1000000, v132')
        k.vmem('global_load_dword v133, v134, s[12:13]', 'pf')
        e('s_waitcnt lgkmcnt(0)')
        k.vmem('global_load_dword v133, v132, s[46:47]', 'pf')
        e('v_min_u32 v132, 0x1bfffc, v132')
        k.vmem('global_load_dword v133, v132, s[44:45]', 'pf')
    k.stamp()
    BA = 16
    AB = 20
    TC = 28
    TS = 44
    SG = 60
    T = 64
    e('v_bfe_u32 v6, v1, 1, 4')
    e('v_and_b32 v7, 1, v1')
    e('v_lshrrev_b32 v2, 5, v1')
    e(f'v_cvt_f32_u32 v{T}, v6'); e(f'v_cvt_f32_u32 v{T+1}, v7'); e(f'v_cvt_f32_u32 v{T+2}, v2')
    e(f'v_fma_f32 v{SG}, v{T+1}, -2.0, 1.0')
    e(f'v_mul_f32 v{T+3}, {f2u(1/16)}, v{T}')
    e(f'v_mul_f32 v{T+4}, {f2u(8.0)}, v{T+2}')
    e(f'v_mul_f32 v{T+4}, v{T+4}, v{T+3}')
    e(f'v_fmac_f32 v{T+4}, {f2u(0.25)}, v{T+1}')
    for j in range(8):
        e(f'v_cos_f32 v{T+8+j}, v{T+4}')
        if j < 7: e(f'v_add_f32 v{T+4}, v{T+4}, v{T+3}')
    e('s_nop 0')
    for p in range(4): e(f'v_cvt_pk_bf16_f32 v{BA+p}, v{T+8+2*p}, v{T+9+2*p}')
    e(f'v_mul_f32 v{T+3}, {f2u(1/512)}, v{T}')
    e(f'v_mul_f32 v{T+5}, v{T+3}, v{SG}')
    e(f'v_mul_f32 v{T+6}, {f2u(5.0)}, v{T+3}'); e(f'v_mul_f32 v{T+7}, {f2u(5.0)}, v{T+5}')
    e(f'v_mul_f32 v{T+4}, 4.0, v{T+2}')
    e(f'v_mul_f32 v{T+8}, v{T+4}, v{T+3}'); e(f'v_mul_f32 v{T+9}, v{T+4}, v{T+5}')
    for r in range(16):
        e(f'v_cos_f32 v{TC+r}, v{T+8}'); e(f'v_sin_f32 v{TS+r}, v{T+9}')
        if r < 15:
            big = (r & 3) == 3
            e(f'v_add_f32 v{T+8}, v{T+8}, v{T+6 if big else T+3}'); e(f'v_add_f32 v{T+9}, v{T+9}, v{T+7 if big else T+5}')
    e('v_and_b32 v6, 15, v1'); e('v_bfe_u32 v7, v1, 4, 1')
    e(f'v_cvt_f32_u32 v{T}, v6'); e(f'v_cvt_f32_u32 v{T+1}, v7')
    e(f'v_mul_f32 v{T+3}, {f2u(1/32)}, v{T}')
    e(f'v_mul_f32 v{T+6}, {f2u(5.0)}, v{T+3}')
    e(f'v_mul_f32 v{T+8}, v{T+4}, v{T+3}')
    e(f'v_fmac_f32 v{T+8}, {f2u(-0.25)}, v{T+1}')
    for r in range(16):
        e(f'v_cos_f32 v{T+10+(r&1)}, v{T+8}')
        if r < 15: e(f'v_add_f32 v{T+8}, v{T+8}, v{T+6 if (r&3)==3 else T+3}')
        else: e('s_nop 0')
        if r & 1: e(f'v_cvt_pk_bf16_f32 v{AB+(r>>1)}, v{T+10}, v{T+11}')
    e('s_lshl_b32 s18, s14, 11')
    e('v_add_u32 v4, s18, v3')
    e('v_lshlrev_b32 v5, 9, v2')
    e('v_bfe_u32 v6, v1, 2, 2'); e('v_lshl_add_u32 v5, v6, 6, v5')
    e('v_bfe_u32 v6, v1, 4, 1'); e('v_lshl_add_u32 v5, v6, 5, v5')
    e('v_and_b32 v6, 3, v1'); e('v_lshl_add_u32 v5, v6, 3, v5')
    e('v_add_u32 v5, s18, v5')
    e('s_mov_b32 s30, 0xffff0000')
    k.stamp()
    AF = 61
    FA = 96
    DA = 64
    for u in range(2):
        k.wait(vm=f'x{u}')
        k.ds(f'ds_write_b128 v4, v[{X+4*u}:{X+4*u+3}] offset:{u*1024}', f'w{u}')
    k.stamp()
    for u in range(2):
        k.wait(lg=f'w{u}')
        for t in range(2):
            k.ds(f'ds_read_b64_tr_b16 v[{FA+4*u+2*t}:{FA+4*u+2*t+1}], v5 offset:{u*1024+t*256}', f'a{u}')
    ST = 104
    for u in range(2):
        s = ST + 4 * u; U = 112
        for i in range(4):
            e(f'v_lshlrev_b32 v{U+2*i}, 16, v{X+4*u+i}'); e(f'v_and_b32 v{U+2*i+1}, s30, v{X+4*u+i}')
        e(f'v_add_f32 v{s}, v{U}, v{U+2}'); e(f'v_add_f32 v{s+1}, v{U+1}, v{U+3}')
        e(f'v_mul_f32 v{s+2}, v{U}, v{U}'); e(f'v_mul_f32 v{s+3}, v{U+1}, v{U+1}')
        for i in range(2, 4):
            e(f'v_add_f32 v{s}, v{s}, v{U+2*i}'); e(f'v_add_f32 v{s+1}, v{s+1}, v{U+2*i+1}')
        for i in range(1, 4):
            e(f'v_fmac_f32 v{s+2}, v{U+2*i}, v{U+2*i}'); e(f'v_fmac_f32 v{s+3}, v{U+2*i+1}, v{U+2*i+1}')
        e(f'v_add_f32 v{s+2}, v{s+2}, v{s+3}')
        k.wait(lg=f'a{u}')
        e(f'v_mfma_f32_32x32x16_bf16 v[{DA+16*u}:{DA+16*u+15}], v[{FA+4*u}:{FA+4*u+3}], v[{BA}:{BA+3}], 0')
    chains = [ST, ST + 1, ST + 2, ST + 4, ST + 5, ST + 6]
    for mod in ('row_shr:1', 'row_shr:2', 'row_shr:4', 'row_shr:8', 'row_bcast:15 row_mask:0xa', 'row_bcast:31 row_mask:0xc'):
        for c in chains:
            m = mod if 'row_mask' in mod else mod + ' row_mask:0xf'
            e(f'v_add_f32_dpp v{c}, v{c}, v{c} {m} bank_mask:0xf' + (' bound_ctrl:0' if 'shr' in mod else ''))
    e('s_nop 0')
    for i, c in enumerate(chains): e(f'v_readlane_b32 s{32+i}, v{c}, 63')
    GP = 96
    for u in range(2):
        d = DA + 16 * u
        for r in range(16):
            e(f'v_mul_f32 v{112+r}, v{TC+r}, v{d+r}')
        for r in range(16):
            e(f'v_fmac_f32_dpp v{112+r}, v{d+r}, v{TS+r} {DPPX}')
        for p in range(8):
            e(f'v_cvt_pk_bf16_f32 v{GP+8*u+p}, v{112+2*p}, v{113+2*p}')
        k.nop(2)
        for ks in range(2):
            cin = '0' if ks == 0 else f'v[{d}:{d+15}]'
            e(f'v_mfma_f32_32x32x16_bf16 v[{d}:{d+15}], v[{AB+4*ks}:{AB+4*ks+3}], v[{GP+8*u+4*ks}:{GP+8*u+4*ks+3}], {cin}')
    for u in range(2):
        a, b, qv = 32 + 3 * u, 33 + 3 * u, 34 + 3 * u
        e(f'v_mov_b32 v12, s{a}')
        e(f'v_add_f32 v13, s{b}, v12')
        e(f'v_subrev_f32 v14, s{b}, v12')
        e('v_mul_f32 v13, 0x3b000000, v13')
        e(f'v_mov_b32 v15, s{qv}')
        e('v_mul_f32 v15, 0x3b000000, v15')
        e('v_fma_f32 v15, -v13, v13, v15')
        e('v_max_f32 v15, 0, v15')
        e('v_add_f32 v15, 0x3727c5ac, v15')
        e(f'v_rsq_f32 v{8+u}, v15')
        e(f'v_max_f32 v12, 0, v{SG}')
        e('v_mul_f32 v14, v14, v12')
        e(f'v_mul_f32 v{10+u}, v14, v{8+u}')
    e('v_cmp_gt_u32 vcc, 2, v1')
    e('s_lshl_b32 s18, s14, 2'); e('s_add_u32 s18, s18, 8192')
    e('v_add_u32 v4, s18, v3')
    for u in range(2):
        d = DA + 16 * u
        for r in range(8):
            e(f'v_fmac_f32_dpp v{d+r}, v{d+8+r}, v{SG} {DPPX}')
        for r in range(8):
            e(f'v_mul_f32 v{d+r}, v{d+r}, v{8+u}')
        e(f'v_cndmask_b32 v{d}, v{d}, v{10+u}, vcc')
    for r in range(8):
        e(f'v_cvt_pk_bf16_f32 v{112+r}, v{DA+r}, v{DA+16+r}')
        e(f'ds_write_b32 v4, v{112+r} offset:{r*1024}')
    e('v_bfe_u32 v6, v1, 1, 4')
    e('v_lshl_add_u32 v6, v2, 6, v6')
    e('s_lshl_b32 s18, s14, 4'); e('s_sub_u32 s18, s18, 1')
    e('v_add_u32 v6, s18, v6')
    e('v_add_u32 v7, 128, v6')
    e('v_and_b32 v6, 255, v6')
    e('s_lshr_b32 s18, s15, 4'); e('s_lshl_b32 s18, s18, 13'); e('s_lshl_b32 s19, s16, 8'); e('s_add_u32 s18, s18, s19')
    e('s_and_b32 s19, s15, 15'); e('s_lshl_b32 s19, s19, 4'); e('s_add_u32 s18, s18, s19')
    if CBUF: e(f's_add_u32 s18, s18, {CBUF}')
    e('v_and_b32 v12, 1, v1'); e('v_lshlrev_b32 v12, 10, v12'); e('v_add_u32 v12, s18, v12')
    for i in range(2):
        e(f'v_lshrrev_b32 v13, 2, v{6+i}'); e('v_lshl_add_u32 v13, v13, 15, v12')
        e(f'v_and_b32 v14, 3, v{6+i}'); e(f'v_lshl_add_u32 v{6+i}, v14, 11, v13')
    e('v_lshlrev_b32 v5, 4, v0')
    e('v_and_b32 v12, 7, v0'); e('v_lshrrev_b32 v13, 3, v0')
    e('v_lshlrev_b32 v8, 10, v12'); e('v_lshl_add_u32 v8, v13, 3, v8')
    e('v_add_u32 v9, 8, v8')
    e('v_add_u32 v10, 264, v8')
    e('v_lshlrev_b32 v14, 10, v12')
    e('v_cmp_eq_u32 vcc, 31, v13')
    e('v_lshlrev_b32 v11, 3, v13'); e('v_sub_u32 v11, 760, v11'); e('v_add_u32 v11, v11, v14')
    e('v_cndmask_b32 v10, v10, v14, vcc')
    e('s_lshl_b32 s18, s15, 15'); e('s_lshl_b32 s19, s16, 7'); e('s_add_u32 s18, s18, s19'); e(f's_add_u32 s18, s18, {HBUF}')
    e('v_lshlrev_b32 v15, 9, v13'); e('v_lshl_add_u32 v15, v12, 4, v15'); e('v_add_u32 v15, s18, v15')
    e('v_add_u32 v14, 0x4000, v15')
    e('s_waitcnt lgkmcnt(0)'); e('s_barrier')
    k.stamp()
    e('ds_read_b128 v[16:19], v5 offset:8192'); e('ds_read_b128 v[20:23], v5 offset:12288')
    for i in range(2):
        e(f'ds_read_b64 v[{24+8*i}:{25+8*i}], v8 offset:{256*i}')
        e(f'ds_read_b32 v{26+8*i}, v{9+i}')
        e(f'ds_read_b64 v[{30+8*i}:{31+8*i}], v11 offset:{256*(1-i)}')
    e('s_waitcnt lgkmcnt(7)')
    e('global_store_dwordx4 v6, v[16:19], s[12:13]')
    e('s_waitcnt lgkmcnt(6)')
    e('global_store_dwordx4 v7, v[20:23], s[12:13]')
    for i in range(2):
        e(f's_waitcnt lgkmcnt({3-3*i})')
        e(f'v_alignbit_b32 v{28+8*i}, v{25+8*i}, v{24+8*i}, 16')
        e(f'v_alignbit_b32 v{29+8*i}, v{26+8*i}, v{25+8*i}, 16')
        e(f'global_store_dwordx4 v15, v[{28+8*i}:{31+8*i}], s[12:13] offset:0' if i == 0 else f'global_store_dwordx4 v14, v[{28+8*i}:{31+8*i}], s[12:13]')
    k.stamp_flush(0)
    e('s_endpgm')
    if pre_gu:
        k.label(LPG); k.nst = 1; k.vm = []; k.lg = []
        e('s_sub_u32 s15, s2, 256')
        emit_prepack_gu(k, 's15')
        k.stamp_flush(0)
        e('s_endpgm')
    if pre_dn:
        k.label(LPD); k.nst = 1; k.vm = []; k.lg = []
        e(f's_sub_u32 s15, s2, {256+ngu}')
        emit_prepack_dn(k, 's15')
        k.stamp_flush(0)
    k.label(END)
    e('s_endpgm')
    return k
```

```python
import sys
sys.path.insert(0, 'dev')
from asmlib import *
from gen import *
import os
EXP = os.environ.get('EXP', '')

def gen_k3():
    NSLOT = 5; CH = 28672; TBL = NSLOT * CH
    k = Kern('k3_kernel', 256, lds=TBL + 896, nvgpr=256, nagpr=40)
    e = k.e
    END = '.L_k3_end'
    e('s_cmp_ge_u32 s2, 256'); e(f's_cbranch_scc1 {END}')
    k.stamp()
    e(f's_load_dwordx2 s[12:13], s[0:1], {KA["ws"]}')
    e('v_and_b32 v9, 63, v0')
    e('v_lshrrev_b32 v10, 6, v0')
    e('v_lshlrev_b32 v1, 4, v9')
    e('v_readfirstlane_b32 s14, v10')
    e('s_and_b32 s15, s2, 7'); e('s_lshr_b32 s16, s2, 3')
    e('s_and_b32 s17, s15, 1'); e('s_lshl_b32 s17, s17, 3'); e('s_and_b32 s18, s16, 7'); e('s_add_u32 s17, s17, s18')
    e('s_lshr_b32 s18, s15, 1'); e('s_lshl_b32 s18, s18, 2'); e('s_lshr_b32 s19, s16, 3'); e('s_add_u32 s18, s18, s19')
    e('s_lshl_b32 s17, s17, 2'); e('s_add_u32 s17, s17, s14')
    e('s_lshl_b32 s19, s17, 15'); e(f's_add_u32 s19, s19, {HBUF}')
    e('s_mul_i32 s20, s18, 229376'); e(f's_add_u32 s20, s20, {WP3}')
    e('s_lshl_b32 s21, s14, 10')
    e('s_add_u32 s20, s20, s21')
    e('v_lshrrev_b32 v11, 5, v0'); e('v_min_u32 v11, 6, v11')
    e('v_and_b32 v12, 31, v0')
    e('v_lshrrev_b32 v13, 4, v12')
    e('s_movk_i32 s22, 1792')
    e('v_mul_u32_u24 v13, s22, v13')
    e('v_lshl_add_u32 v13, v11, 4, v13')
    e('v_and_b32 v14, 15, v12'); e('v_add_u32 v13, v13, v14')
    e('s_mul_i32 s22, s18, 112')
    e('v_add_u32 v13, s22, v13')
    e('v_lshlrev_b32 v13, 2, v13')
    e('v_bfe_u32 v14, v12, 2, 1')
    e('v_lshl_add_u32 v14, v11, 1, v14')
    e('v_lshlrev_b32 v14, 4, v14')
    e('v_and_b32 v15, 3, v12'); e('v_add_u32 v14, v14, v15')
    e('v_lshrrev_b32 v15, 3, v12'); e('v_lshl_add_u32 v14, v15, 2, v14')
    e('v_lshlrev_b32 v14, 2, v14')
    e(f'v_add_u32 v15, {TBL}, v14')
    e('v_mov_b32 v2, v1'); e('v_add_u32 v3, 57344, v1'); e('v_add_u32 v4, 114688, v1')
    e('s_waitcnt lgkmcnt(0)')
    e('s_add_u32 s4, s12, s19'); e('s_addc_u32 s5, s13, 0')
    e('s_add_u32 s6, s12, s20'); e('s_addc_u32 s7, s13, 0')
    e(f's_add_u32 s8, s12, {CSUMP}'); e('s_addc_u32 s9, s13, 0')
    TOK = 16; ACC = 144
    def issue_tok(c):
        for ks in range(4):
            kk = 4 * c + ks
            k.vmem(f'global_load_dwordx4 v[{TOK+4*kk}:{TOK+4*kk+3}], v1, s[4:5] offset:{ks*1024}', f'c{c}')
        add64(k, 4, 4096)
    def issue_dma(c, n0=0, n1=7):
        for n in range(n0, n1):
            e(f's_add_u32 m0, s21, {(c % NSLOT)*CH + n*4096}')
            e('s_nop 0')
            k.vmem('global_load_lds_dwordx4 v1, s[6:7]', f'c{c}')
            add64(k, 6, 4096)
    for c in range(NSLOT):
        issue_tok(c); issue_dma(c)
        if c == 1:
            for g in range(8):
                k.vmem(f'global_load_dword a{32+g}, v13, s[8:9]', 'cs')
                if g < 7: add64(k, 8, 14336)
    for i in range(112): e(f'v_mov_b32 v{ACC+i}, 0')
    for i in range(5, 9): e(f'v_mov_b32 v{i}, 0')
    e(f's_mov_b32 s30, {ONES}')
    PF = 7; R = 8
    NST = 224
    def rd(s):
        c, rem = divmod(s, 28)
        addr = (c % NSLOT) * CH + rem * 1024
        b, off = divmod(addr, 57344)
        a = 4 * (s % R)
        k.ds(f'ds_read_b128 a[{a}:{a+3}], v{2+b} offset:{off}', f'f{s}')
    k.stamp()
    k.wait(vm='c0'); e('s_barrier')
    k.stamp()
    for s in range(PF): rd(s)
    for s in range(NST):
        c, rem = divmod(s, 28); ks, j = divmod(rem, 7); kk = 4 * c + ks
        k.wait(lg=f'f{s}')
        a = 4 * (s % R)
        e(f'v_mfma_f32_32x32x16_bf16 v[{ACC+16*j}:{ACC+16*j+15}], a[{a}:{a+3}], v[{TOK+4*kk}:{TOK+4*kk+3}], v[{ACC+16*j}:{ACC+16*j+15}]')
        nxt = s + PF
        if nxt < NST:
            if nxt % 28 == 0:
                cn = nxt // 28
                if cn == 5:
                    k.wait(vm='cs')
                    for g in range(4): e(f'v_accvgpr_read_b32 v{9+g}, a{32+g}')
                    e('v_add_f32 v9, v9, v10'); e('v_add_f32 v11, v11, v12'); e('v_add_f32 v9, v9, v11')
                    for g in range(3): e(f'v_accvgpr_read_b32 v{10+g}, a{36+g}')
                    e('v_add_f32 v9, v9, v10'); e('v_accvgpr_read_b32 v10, a39'); e('v_add_f32 v11, v11, v12')
                    e('v_add_f32 v9, v9, v11'); e('v_add_f32 v9, v9, v10')
                    k.ds('ds_write_b32 v15, v9', 'tbl')
                    k.wait(lg='tbl')
                k.wait(vm=f'c{cn}')
                e('s_barrier')
                k.stamp()
                if 1 <= cn - 1 <= 3:
                    issue_tok(cn + 3); issue_dma(cn + 3)
            rd(nxt)
        dots = [j] if j < 6 else [6, 7]
        for d in dots:
            rg = TOK + 4 * kk + (d >> 1)
            if d & 1: e(f'v_dot2_f32_bf16 v{7 + ((d>>1)&1)}, v{rg}, v{rg}, v{7 + ((d>>1)&1)}')
            else: e(f'v_dot2_f32_bf16 v{5 + ((d>>1)&1)}, v{rg}, s30, v{5 + ((d>>1)&1)}')
    k.stamp()
    k.nop(3)
    e('v_add_f32 v5, v5, v6'); e('v_add_f32 v7, v7, v8')
    e('v_mov_b32 v6, v5'); e('v_mov_b32 v8, v7')
    k.nop(1)
    e('v_permlane32_swap_b32 v6, v5'); e('v_permlane32_swap_b32 v8, v7')
    k.nop(1)
    e('v_add_f32 v5, v5, v6'); e('v_add_f32 v7, v7, v8')
    e('v_mul_f32 v5, 0xbb000000, v5')
    e('v_mul_f32 v7, 0x3b000000, v7')
    e('v_fma_f32 v7, -v5, v5, v7')
    e('v_max_f32 v7, 0, v7')
    e('v_add_f32 v7, 0x3727c5ac, v7')
    e('v_rsq_f32 v8, v7')
    e('v_mov_b32 v10, v5')
    e('v_lshrrev_b32 v9, 5, v0'); e('v_and_b32 v9, 1, v9'); e('v_lshlrev_b32 v9, 6, v9')
    e(f'v_add_u32 v9, {TBL}, v9')
    e('v_mul_f32 v12, 0xbfb8aa3b, v8')
    e('s_mul_i32 s22, s17, 112'); e('s_mul_i32 s23, s18, 7'); e('s_add_u32 s22, s22, s23'); e('s_lshl_b32 s22, s22, 10')
    e(f's_add_u32 s22, s22, {HHBUF}')
    e('s_add_u32 s12, s12, s22'); e('s_addc_u32 s13, s13, 0')
    e('v_add_u32 v2, 4096, v1')
    CS = 16
    for j in range(7):
        for q in range(4):
            k.ds(f'ds_read_b128 v[{CS+16*j+4*q}:{CS+16*j+4*q+3}], v9 offset:{j*128+q*16}', f't{j}')
        if j == 2: k.wait(lg='t0')
        if j == 5: k.wait(lg='t2')
    O = 128
    for j in range(7):
        k.wait(lg=f't{j}')
        A = ACC + 16 * j; C = CS + 16 * j
        for p in range(4):
            e(f'v_pk_fma_f32 v[{A+2*p}:{A+2*p+1}], v[{C+2*p}:{C+2*p+1}], v[10:11], v[{A+2*p}:{A+2*p+1}] op_sel_hi:[1,0,1]')
        for p in range(4):
            e(f'v_pk_mul_f32 v[{A+2*p}:{A+2*p+1}], v[{A+2*p}:{A+2*p+1}], v[12:13] op_sel_hi:[1,0]')
        for r in range(8):
            e(f'v_exp_f32 v{A+r}, v{A+r}')
        for p in range(4):
            e(f'v_pk_fma_f32 v[{A+8+2*p}:{A+9+2*p}], v[{C+8+2*p}:{C+9+2*p}], v[10:11], v[{A+8+2*p}:{A+9+2*p}] op_sel_hi:[1,0,1]')
        for r in range(8):
            e(f'v_add_f32 v{A+r}, 1.0, v{A+r}')
        for r in range(8):
            e(f'v_rcp_f32 v{A+r}, v{A+r}')
        for p in range(4):
            e(f'v_pk_mul_f32 v[{A+8+2*p}:{A+9+2*p}], v[{A+8+2*p}:{A+9+2*p}], v[8:9] op_sel_hi:[1,0]')
        for p in range(4):
            e(f'v_pk_mul_f32 v[{A+2*p}:{A+2*p+1}], v[{A+2*p}:{A+2*p+1}], v[{A+8+2*p}:{A+9+2*p}]')
        o = O + 4 * (j & 1)
        for p in range(4):
            e(f'v_cvt_pk_bf16_f32 v{o+p}, v{A+2*p}, v{A+2*p+1}')
        e(f'global_store_dwordx4 v{1 if j < 4 else 2}, v[{o}:{o+3}], s[12:13] offset:{(j&3)*1024}')
    k.stamp_flush(2)
    k.label(END)
    e('s_endpgm')
    return k

def gen_k4():
    RK = 14
    k = Kern('k4_kernel', 256, lds=49152, nvgpr=128, nagpr=16 * RK)
    e = k.e
    END = '.L_k4_end'
    e('s_cmp_ge_u32 s2, 256'); e(f's_cbranch_scc1 {END}')
    k.stamp()
    e(f's_load_dwordx2 s[12:13], s[0:1], {KA["ws"]}')
    e(f's_load_dwordx2 s[26:27], s[0:1], {KA["out"]}')
    e('v_and_b32 v9, 63, v0')
    e('v_lshrrev_b32 v10, 6, v0')
    e('v_lshlrev_b32 v1, 4, v9')
    e('v_readfirstlane_b32 s14, v10')
    e('s_and_b32 s15, s2, 7'); e('s_lshr_b32 s16, s2, 3')
    e('s_and_b32 s17, s15, 1'); e('s_lshl_b32 s17, s17, 2'); e('s_and_b32 s18, s16, 3'); e('s_add_u32 s17, s17, s18')
    e('s_lshr_b32 s18, s15, 1'); e('s_lshl_b32 s18, s18, 3'); e('s_lshr_b32 s19, s16, 2'); e('s_add_u32 s18, s18, s19')
    e('s_and_b32 s24, s14, 1'); e('s_lshr_b32 s25, s14, 1')
    e('s_mul_i32 s19, s14, 28')
    e('s_mul_i32 s20, s17, 112'); e('s_add_u32 s20, s20, s19'); e('s_lshl_b32 s20, s20, 1')
    e('s_add_u32 s21, s20, s24'); e('s_xor_b32 s22, s24, 1'); e('s_add_u32 s22, s20, s22')
    e('s_lshl_b32 s21, s21, 10'); e('s_lshl_b32 s22, s22, 10')
    e(f's_add_u32 s21, s21, {WP4}'); e(f's_add_u32 s22, s22, {WP4}')
    e('s_lshl_b32 s23, s18, 1'); e('s_add_u32 s28, s23, s25')
    e('s_xor_b32 s29, s25, 1'); e('s_add_u32 s29, s23, s29')
    e('s_mul_i32 s30, s28, 112'); e('s_add_u32 s30, s30, s19'); e('s_lshl_b32 s30, s30, 10'); e(f's_add_u32 s30, s30, {HHBUF}')
    e('s_mul_i32 s31, s29, 112'); e('s_add_u32 s31, s31, s19'); e('s_lshl_b32 s31, s31, 10'); e(f's_add_u32 s31, s31, {HHBUF}')
    if 'k4same' in EXP:
        e('s_mul_i32 s21, s14, 57344'); e(f's_add_u32 s21, s21, {WP4}'); e('s_add_u32 s22, s21, 1024')
        e('s_mul_i32 s30, s14, 28672'); e(f's_add_u32 s30, s30, {HHBUF}'); e('s_add_u32 s31, s30, 114688')
    e('s_waitcnt lgkmcnt(0)')
    for (p, o) in ((4, 21), (6, 22), (8, 30), (10, 31)):
        e(f's_add_u32 s{p}, s12, s{o}'); e(f's_addc_u32 s{p+1}, s13, 0')
    def issue(s):
        a = 16 * (s % RK)
        k.vmem(f'global_load_dwordx4 a[{a}:{a+3}], v1, s[4:5] offset:{(s&1)*2048}', f'k{s}')
        k.vmem(f'global_load_dwordx4 a[{a+8}:{a+11}], v1, s[8:9] offset:{(s&3)*1024}', f'k{s}')
        k.vmem(f'global_load_dwordx4 a[{a+4}:{a+7}], v1, s[6:7] offset:{(s&1)*2048}', f'k{s}')
        k.vmem(f'global_load_dwordx4 a[{a+12}:{a+15}], v1, s[10:11] offset:{(s&3)*1024}', f'k{s}')
        if s & 1: add64(k, 4, 4096); add64(k, 6, 4096)
        if (s & 3) == 3: add64(k, 8, 4096); add64(k, 10, 4096)
    for s in range(RK): issue(s)
    RES = 96
    e('v_and_b32 v2, 31, v9'); e('v_lshrrev_b32 v3, 5, v9')
    e('s_lshl_b32 s20, s17, 4'); e('s_lshl_b32 s21, s24, 3'); e('s_add_u32 s20, s20, s21')
    e('v_lshl_add_u32 v4, v3, 2, s20')
    e('s_lshl_b32 s21, s28, 15'); e(f's_add_u32 s21, s21, {HBUF}')
    e('v_lshl_add_u32 v5, v2, 4, s21')
    LUP = '.L_k4_up'; LJ = '.L_k4_j'
    e('s_cmp_ge_u32 s17, 4'); e(f's_cbranch_scc1 {LUP}')
    e('v_add_u32 v6, 63, v4'); e('v_and_b32 v6, 63, v6')
    e('v_lshl_add_u32 v6, v6, 9, v5')
    e('v_lshl_add_u32 v7, v4, 9, v5')
    e(f'global_load_dword v{RES+1}, v6, s[12:13] offset:4')
    for a in range(4):
        e(f'global_load_dwordx2 v[{RES+2+2*a}:{RES+3+2*a}], v7, s[12:13] offset:{a*512}')
    e(f's_branch {LJ}')
    k.label(LUP)
    e('v_sub_u32 v6, 124, v4')
    e('v_lshl_add_u32 v7, v6, 9, v5')
    e(f'global_load_dword v{RES+1}, v7, s[12:13]')
    for a in range(4):
        e(f'global_load_dwordx2 v[{RES+2+2*a}:{RES+3+2*a}], v7, s[12:13] offset:{(3-a)*512+8}')
    k.label(LJ)
    for _ in range(5): k.vm.append('res')
    ACC = 32
    for i in range(64): e(f'v_mov_b32 v{ACC+i}, 0')
    k.stamp()
    for s in range(28):
        a = 16 * (s % RK)
        k.wait(vm=f'k{s}')
        if s in (0, 7, 14, 21): k.stamp()
        for ib in range(2):
            for im in range(2):
                d = ACC + 16 * (im + 2 * ib)
                e(f'v_mfma_f32_32x32x16_bf16 v[{d}:{d+15}], a[{a+4*im}:{a+4*im+3}], a[{a+8+4*ib}:{a+8+4*ib+3}], v[{d}:{d+15}]')
        if s + RK < 28: issue(s + RK)
    k.stamp()
    for t in range(1, 4):
        e(f's_xor_b32 s20, s14, {t}'); e('s_mul_i32 s20, s20, 12288'); e(f's_add_u32 s20, s20, {(t-1)*4096}')
        e(f'v_add_u32 v{10+t}, s20, v1')
    e('s_mul_i32 s20, s14, 12288'); e('v_add_u32 v10, s20, v1')
    k.nop(4)
    for t in range(1, 4):
        for rq in range(4):
            d = ACC + 16 * t + 4 * rq
            e(f'ds_write_b128 v{10+t}, v[{d}:{d+3}] offset:{rq*1024}')
    e('s_waitcnt lgkmcnt(0)'); e('s_barrier')
    k.stamp()
    for t in range(3):
        for rq in range(4):
            d = ACC + 16 * (t + 1) + 4 * rq
            k.ds(f'ds_read_b128 v[{d}:{d+3}], v10 offset:{t*4096+rq*1024}', f'r{t}')
    e('v_lshlrev_b32 v6, 16, v2'); e('s_lshl_b32 s20, s28, 10'); e('v_add_u32 v6, s20, v6')
    e('v_lshl_add_u32 v6, v4, 3, v6')
    k.wait(vm='res')
    LUP2 = '.L_k4_up2'; LJ2 = '.L_k4_j2'
    e('s_cmp_ge_u32 s17, 4'); e(f's_cbranch_scc1 {LUP2}')
    for p in range(8):
        e(f'v_alignbit_b32 v{16+p}, v{RES+2+p}, v{RES+1+p}, 16')
    e(f's_branch {LJ2}')
    k.label(LUP2)
    for p in range(8):
        e(f'v_mov_b32 v{16+p}, v{RES+2+p}')
    k.label(LJ2)
    e('s_mov_b32 s20, 0xffff0000')
    for p in range(8):
        e(f'v_lshlrev_b32 v{RES+2*p}, 16, v{16+p}')
        e(f'v_and_b32 v{RES+2*p+1}, s20, v{16+p}')
    for r in range(16):
        e(f'v_add_f32 v{ACC+r}, v{ACC+r}, v{RES+r}')
    for t in range(3):
        k.wait(lg=f'r{t}')
        for r in range(16):
            e(f'v_add_f32 v{ACC+r}, v{ACC+r}, v{ACC+16*(t+1)+r}')
    for p in range(8):
        e(f'v_cvt_pk_bf16_f32 v{16+p}, v{ACC+2*p}, v{ACC+2*p+1}')
    e('global_store_dwordx4 v6, v[16:19], s[26:27]')
    e('global_store_dwordx4 v6, v[20:23], s[26:27] offset:16')
    k.stamp_flush(3)
    k.label(END)
    e('s_endpgm')
    return k
```

```python
import sys, os
sys.path.insert(0, 'dev')
from asmlib import *
from gen import *
EXP = os.environ.get('EXP', '')

KC, NS, PF, R = 2, 6, 7, 8
NSTG = 32 // KC
WB = KC * 7 * 1024; TB = KC * 4 * 1024; SB = WB + TB
TBL = NS * SB
LCNT = TBL + 896
LDS_TOTAL = LCNT + 64
NWB, NHB = 10, 6
HB0 = NWB * 8192
NSB = 28
SPIN_MAX = 200000

def lds_signal(k, word, target, cnt_off_sgpr, tmpv):
    e = k.e
    lab = k.newlabel('sig')
    e('s_waitcnt vmcnt(0)')
    e(f'v_mov_b32 v{tmpv}, {LCNT + 4*word}'); e(f'v_mov_b32 v{tmpv+1}, 1')
    e('s_mov_b64 s[36:37], exec'); e('s_mov_b64 exec, 1')
    e(f'ds_add_rtn_u32 v{tmpv+2}, v{tmpv}, v{tmpv+1}')
    e('s_waitcnt lgkmcnt(0)')
    e(f'v_readfirstlane_b32 s38, v{tmpv+2}')
    e('s_nop 3')
    e(f's_cmp_lg_u32 s38, {target-1}'); e(f's_cbranch_scc1 {lab}')
    e(f'v_mov_b32 v{tmpv}, {cnt_off_sgpr}')
    e(f'global_atomic_add v{tmpv}, v{tmpv+1}, s[12:13] sc1')
    k.label(lab)
    e('s_mov_b64 exec, s[36:37]')

def wait_flag(k, word, cnt_off_sgpr, target, tmpv, own_word=None):
    e = k.e
    lp = k.newlabel('poll'); ld = k.newlabel('polld'); ll = k.newlabel('lspin'); le = k.newlabel('wend')
    e(f'v_mov_b32 v{tmpv}, {cnt_off_sgpr}'); e(f'v_mov_b32 v{tmpv+1}, {LCNT + 4*word}')
    e('s_mov_b32 s39, 0')
    e('s_cmp_lg_u32 s24, 0'); e(f's_cbranch_scc1 {ll}')
    if own_word is not None:
        lo = k.newlabel('own'); lo2 = k.newlabel('ownd')
        e(f'v_mov_b32 v{tmpv+3}, {LCNT + 4*own_word}')
        k.label(lo)
        e(f'ds_read_b32 v{tmpv+2}, v{tmpv+3}')
        e('s_waitcnt lgkmcnt(0)')
        e(f'v_readfirstlane_b32 s38, v{tmpv+2}')
        e('s_add_u32 s39, s39, 1')
        e('s_cmp_ge_u32 s38, 4'); e(f's_cbranch_scc1 {lo2}')
        e(f's_cmp_ge_u32 s39, {SPIN_MAX*8}'); e(f's_cbranch_scc1 {lo2}')
        e(f's_sleep {os.environ.get("LSL", "8")}'); e(f's_branch {lo}')
        k.label(lo2)
        e('s_mov_b32 s39, 0')
    k.label(lp)
    e(f'global_load_dword v{tmpv+2}, v{tmpv}, s[12:13] sc1')
    e('s_waitcnt vmcnt(0)')
    e(f'v_readfirstlane_b32 s38, v{tmpv+2}')
    e('s_add_u32 s39, s39, 1')
    e(f's_cmp_ge_u32 s38, {target}'); e(f's_cbranch_scc1 {ld}')
    e(f's_cmp_ge_u32 s39, {SPIN_MAX}'); e(f's_cbranch_scc1 {ld}')
    e(f's_sleep {os.environ.get("PSL", "16")}'); e(f's_branch {lp}')
    k.label(ld)
    e(f'v_mov_b32 v{tmpv+2}, 1')
    e(f'ds_write_b32 v{tmpv+1}, v{tmpv+2}')
    e('s_waitcnt lgkmcnt(0)')
    e(f's_branch {le}')
    k.label(ll)
    e(f'ds_read_b32 v{tmpv+2}, v{tmpv+1}')
    e('s_waitcnt lgkmcnt(0)')
    e(f'v_readfirstlane_b32 s38, v{tmpv+2}')
    e('s_add_u32 s39, s39, 1')
    e('s_cmp_lg_u32 s38, 0'); e(f's_cbranch_scc1 {le}')
    e(f's_cmp_ge_u32 s39, {SPIN_MAX*8}'); e(f's_cbranch_scc1 {le}')
    e(f's_sleep {os.environ.get("LSL", "8")}'); e(f's_branch {ll}')
    k.label(le)

def gen_k34():
    k = Kern('k3_kernel', 256, block=512, lds=LDS_TOTAL, nvgpr=200)
    e = k.e
    END = '.L_k3_end'; LPROD = '.L_k3_prod'
    e('s_cmp_ge_u32 s2, 256'); e(f's_cbranch_scc1 {END}')
    k.stamp()
    e(f's_load_dwordx2 s[12:13], s[0:1], {KA["ws"]}')
    e(f's_load_dwordx4 s[32:35], s[0:1], {KA["out"]}')
    e('v_and_b32 v9, 63, v0')
    e('v_lshrrev_b32 v10, 6, v0')
    e('v_lshlrev_b32 v1, 4, v9')
    e('v_readfirstlane_b32 s14, v10')
    e('s_and_b32 s15, s2, 7'); e('s_lshr_b32 s16, s2, 3')
    e('s_and_b32 s17, s15, 1'); e('s_lshl_b32 s17, s17, 3'); e('s_and_b32 s18, s16, 7'); e('s_add_u32 s40, s17, s18')
    e('s_lshr_b32 s18, s15, 1'); e('s_lshl_b32 s18, s18, 2'); e('s_lshr_b32 s19, s16, 3'); e('s_add_u32 s18, s18, s19')
    e('s_and_b32 s24, s14, 3')
    e('s_lshl_b32 s17, s40, 2'); e('s_add_u32 s17, s17, s24')
    e('s_and_b32 s41, s15, 1'); e('s_lshl_b32 s41, s41, 2'); e('s_and_b32 s19, s16, 3'); e('s_add_u32 s41, s41, s19')
    e('s_lshr_b32 s42, s15, 1'); e('s_lshl_b32 s42, s42, 3'); e('s_lshr_b32 s19, s16, 2'); e('s_add_u32 s42, s42, s19')
    e('s_cmp_ge_u32 s14, 4'); e(f's_cbranch_scc1 {LPROD}')
    ACC = 16; WR = 128; TR = WR + 4 * R; NT = 4
    U = TR + 4 * NT
    nbase = (TBL + 57343) // 57344
    for b in range(nbase):
        e(f'v_add_u32 v{2+b}, {57344*b}, v1' if b else 'v_mov_b32 v2, v1')
    e('s_lshl_b32 s20, s24, 10')
    for b in range(nbase):
        e(f'v_add_u32 v{10+b}, s20, v{2+b}')
    for i in range(112): e(f'v_mov_b32 v{ACC+i}, 0')
    for i in range(5, 9): e(f'v_mov_b32 v{i}, 0')
    e('s_mov_b32 s30, 0xffff0000')
    NST = 224; SPS = 7 * KC
    def rd(s):
        c, rem = divmod(s, SPS)
        ks, j = divmod(rem, 7)
        if j == 0:
            kk = c * KC + ks
            addr = (c % NS) * SB + WB + ks * 4096
            b, off = divmod(addr, 57344)
            t = TR + 4 * (kk % NT)
            k.ds(f'ds_read_b128 v[{t}:{t+3}], v{10+b} offset:{off}', f'f{s}')
        addr = (c % NS) * SB + rem * 1024
        b, off = divmod(addr, 57344)
        a = WR + 4 * (s % R)
        k.ds(f'ds_read_b128 v[{a}:{a+3}], v{2+b} offset:{off}', f'f{s}')
    k.stamp()
    e('s_barrier')
    k.stamp()
    for s in range(PF): rd(s)
    pend = []
    for s in range(NST):
        c, rem = divmod(s, SPS); ks, j = divmod(rem, 7); kk = c * KC + ks
        k.wait(lg=f'f{s}')
        a = WR + 4 * (s % R); t = TR + 4 * (kk % NT)
        e(f'v_mfma_f32_32x32x16_bf16 v[{ACC+16*j}:{ACC+16*j+15}], v[{a}:{a+3}], v[{t}:{t+3}], v[{ACC+16*j}:{ACC+16*j+15}]')
        nxt = s + PF
        if nxt < NST:
            if nxt % SPS == 0:
                e('s_barrier')
                if (nxt // SPS) % 8 == 0: k.stamp()
            rd(nxt)
        if j == 0:
            for i in range(4):
                lo = U + 2 * i; hi = lo + 1
                pend += [f'v_lshlrev_b32 v{lo}, 16, v{t+i}', f'v_and_b32 v{hi}, s30, v{t+i}']
            for i in range(4):
                lo = U + 2 * i; hi = lo + 1
                pend += [f'v_add_f32 v5, v5, v{lo}', f'v_add_f32 v6, v6, v{hi}', f'v_fmac_f32 v7, v{lo}, v{lo}', f'v_fmac_f32 v8, v{hi}, v{hi}']
        n = 4 if j < 3 else 3
        for _ in range(n):
            if pend: e(pend.pop(0))
    assert not pend
    e('s_barrier')
    k.stamp()
    e('v_add_f32 v5, v5, v6'); e('v_add_f32 v7, v7, v8')
    e('v_mov_b32 v6, v5'); e('v_mov_b32 v8, v7')
    k.nop(1)
    e('v_permlane32_swap_b32 v6, v5'); e('v_permlane32_swap_b32 v8, v7')
    k.nop(1)
    e('v_add_f32 v5, v5, v6'); e('v_add_f32 v7, v7, v8')
    e('v_mul_f32 v5, 0xbb000000, v5')
    e('v_mul_f32 v7, 0x3b000000, v7')
    e('v_fma_f32 v7, -v5, v5, v7')
    e('v_max_f32 v7, 0, v7')
    e('v_add_f32 v7, 0x3727c5ac, v7')
    e('v_rsq_f32 v8, v7')
    e('v_mov_b32 v10, v5')
    e('v_lshrrev_b32 v9, 5, v0'); e('v_and_b32 v9, 1, v9'); e('v_lshlrev_b32 v9, 6, v9')
    e(f'v_add_u32 v9, {TBL}, v9')
    e('v_mul_f32 v12, 0xbfb8aa3b, v8')
    e('s_mul_i32 s22, s17, 112'); e('s_mul_i32 s23, s18, 7'); e('s_add_u32 s22, s22, s23'); e('s_lshl_b32 s22, s22, 10')
    e(f's_add_u32 s22, s22, {HHBUF}')
    e('s_add_u32 s4, s12, s22'); e('s_addc_u32 s5, s13, 0')
    e('v_add_u32 v2, 4096, v1')
    CS = 128; O = 176
    def rdt(j):
        for q in range(4):
            cc = CS + 16 * (j % 3) + 4 * q
            k.ds(f'ds_read_b128 v[{cc}:{cc+3}], v9 offset:{j*128+q*16}', f't{j}')
    rdt(0); rdt(1); rdt(2)
    for j in range(7):
        k.wait(lg=f't{j}')
        A = ACC + 16 * j; C = CS + 16 * (j % 3)
        for p in range(4):
            e(f'v_pk_fma_f32 v[{A+2*p}:{A+2*p+1}], v[{C+2*p}:{C+2*p+1}], v[10:11], v[{A+2*p}:{A+2*p+1}] op_sel_hi:[1,0,1]')
        for p in range(4):
            e(f'v_pk_fma_f32 v[{A+8+2*p}:{A+9+2*p}], v[{C+8+2*p}:{C+9+2*p}], v[10:11], v[{A+8+2*p}:{A+9+2*p}] op_sel_hi:[1,0,1]')
        if j + 3 < 7: rdt(j + 3)
        for p in range(4):
            e(f'v_pk_mul_f32 v[{A+2*p}:{A+2*p+1}], v[{A+2*p}:{A+2*p+1}], v[12:13] op_sel_hi:[1,0]')
        for r in range(8):
            e(f'v_exp_f32 v{A+r}, v{A+r}')
        for p in range(4):
            e(f'v_pk_mul_f32 v[{A+8+2*p}:{A+9+2*p}], v[{A+8+2*p}:{A+9+2*p}], v[8:9] op_sel_hi:[1,0]')
        for r in range(8):
            e(f'v_add_f32 v{A+r}, 1.0, v{A+r}')
        for r in range(8):
            e(f'v_rcp_f32 v{A+r}, v{A+r}')
        e('s_nop 0')
        for p in range(4):
            e(f'v_pk_mul_f32 v[{A+2*p}:{A+2*p+1}], v[{A+2*p}:{A+2*p+1}], v[{A+8+2*p}:{A+9+2*p}]')
        o = O + 4 * (j & 1)
        for p in range(4):
            e(f'v_cvt_pk_bf16_f32 v{o+p}, v{A+2*p}, v{A+2*p+1}')
        e(f'global_store_dwordx4 v{1 if j < 4 else 2}, v[{o}:{o+3}], s[4:5] offset:{(j&3)*1024} sc1')
    k.stamp()
    e('s_lshl_b32 s43, s40, 8'); e(f's_add_u32 s43, s43, {CNT}')
    lds_signal(k, 0, 4, 's43', 16)
    k.stamp()
    k.vm = []; k.lg = []
    e('s_and_b32 s44, s24, 1'); e('s_lshr_b32 s45, s24, 1')
    e('s_lshl_b32 s28, s42, 1'); e('s_add_u32 s28, s28, s45')
    BACC = 16; BR = 32; PB = 4
    RES = 96
    for i in range(16): e(f'v_mov_b32 v{BACC+i}, 0')
    e('s_lshl_b32 s20, s44, 10'); e('v_add_u32 v2, s20, v1'); e('v_add_u32 v3, 40960, v2')
    e('s_lshl_b32 s20, s45, 12'); e(f's_add_u32 s20, s20, {HB0}'); e('v_add_u32 v4, s20, v1')
    e('v_and_b32 v9, 63, v0')
    e('v_and_b32 v5, 31, v9'); e('v_lshrrev_b32 v6, 5, v9')
    e('s_lshl_b32 s20, s41, 4'); e('s_lshl_b32 s21, s44, 3'); e('s_add_u32 s20, s20, s21')
    e('v_lshl_add_u32 v7, v6, 2, s20')
    e('s_lshl_b32 s21, s28, 15'); e(f's_add_u32 s21, s21, {HBUF}')
    e('v_lshl_add_u32 v8, v5, 4, s21')
    LUP = '.L_k4_up'; LJ = '.L_k4_j'
    e('s_cmp_ge_u32 s41, 4'); e(f's_cbranch_scc1 {LUP}')
    e('v_add_u32 v10, 63, v7'); e('v_and_b32 v10, 63, v10')
    e('v_lshl_add_u32 v10, v10, 9, v8')
    e('v_lshl_add_u32 v11, v7, 9, v8')
    e(f'global_load_dword v{RES+1}, v10, s[12:13] offset:4 sc1')
    for a in range(4):
        e(f'global_load_dwordx2 v[{RES+2+2*a}:{RES+3+2*a}], v11, s[12:13] offset:{a*512} sc1')
    e(f's_branch {LJ}')
    k.label(LUP)
    e('v_sub_u32 v10, 124, v7')
    e('v_lshl_add_u32 v11, v10, 9, v8')
    for a in range(4):
        e(f'global_load_dwordx2 v[{RES+2+2*a}:{RES+3+2*a}], v11, s[12:13] offset:{(3-a)*512+8} sc1')
    k.label(LJ)
    e('v_lshlrev_b32 v6, 16, v5'); e('s_lshl_b32 s20, s28, 10'); e('v_add_u32 v6, s20, v6')
    e('v_lshl_add_u32 v6, v7, 3, v6')
    def rdb(s):
        c, ks = divmod(s, 4)
        wa = (c % NWB) * 8192 + ks * 2048
        b, off = divmod(wa, 40960)
        r = BR + 8 * (s % PB)
        k.ds(f'ds_read_b128 v[{r}:{r+3}], v{2+b} offset:{off}', f'g{s}')
        k.ds(f'ds_read_b128 v[{r+4}:{r+7}], v4 offset:{(c % NHB)*8192 + ks*1024}', f'g{s}')
    e('s_barrier')
    k.stamp()
    PFB = 3
    for s in range(PFB): rdb(s)
    for s in range(112):
        k.wait(lg=f'g{s}')
        r = BR + 8 * (s % PB)
        e(f'v_mfma_f32_32x32x16_bf16 v[{BACC}:{BACC+15}], v[{r}:{r+3}], v[{r+4}:{r+7}], v[{BACC}:{BACC+15}]')
        nxt = s + PFB
        if nxt < 112:
            if nxt % 4 == 0:
                e('s_barrier')
                if (nxt // 4) % 14 == 0: k.stamp()
            rdb(nxt)
    k.stamp()
    e('s_waitcnt vmcnt(0)')
    LUP2 = '.L_k4_up2'; LJ2 = '.L_k4_j2'
    e('s_cmp_ge_u32 s41, 4'); e(f's_cbranch_scc1 {LUP2}')
    for p in range(8):
        e(f'v_alignbit_b32 v{64+p}, v{RES+2+p}, v{RES+1+p}, 16')
    e(f's_branch {LJ2}')
    k.label(LUP2)
    for p in range(8):
        e(f'v_mov_b32 v{64+p}, v{RES+2+p}')
    k.label(LJ2)
    for p in range(8):
        e(f'v_lshlrev_b32 v{RES+2*p}, 16, v{64+p}')
        e(f'v_and_b32 v{RES+2*p+1}, s30, v{64+p}')
    for r in range(16):
        e(f'v_add_f32 v{BACC+r}, v{BACC+r}, v{RES+r}')
    for p in range(8):
        e(f'v_cvt_pk_bf16_f32 v{64+p}, v{BACC+2*p}, v{BACC+2*p+1}')
    e('global_store_dwordx4 v6, v[64:67], s[32:33]')
    e('global_store_dwordx4 v6, v[68:71], s[32:33] offset:16')
    k.stamp_flush(2, 's24')
    e('s_endpgm')
    k.label(LPROD)
    k.vm = []; k.lg = []
    e(f'v_mov_b32 v2, {LCNT}'); e('v_mov_b32 v4, 0'); e('v_mov_b32 v5, 0'); e('v_mov_b32 v6, 0'); e('v_mov_b32 v7, 0')
    e('ds_write_b128 v2, v[4:7]')
    e('s_lshl_b32 s19, s17, 15'); e(f's_add_u32 s19, s19, {HBUF}')
    e('s_mul_i32 s20, s18, 229376'); e(f's_add_u32 s20, s20, {WP3}')
    e('s_lshl_b32 s21, s24, 10')
    e('s_add_u32 s20, s20, s21')
    e('s_waitcnt lgkmcnt(0)')
    e('s_add_u32 s4, s12, s19'); e('s_addc_u32 s5, s13, 0')
    e('s_add_u32 s6, s12, s20'); e('s_addc_u32 s7, s13, 0')
    e(f's_add_u32 s8, s12, {CSUMP}'); e('s_addc_u32 s9, s13, 0')
    NW = 7 * KC
    nfull = NW // 4; rem = NW % 4
    def issue_stage(c):
        base = (c % NS) * SB
        for ks in range(KC):
            e(f's_add_u32 m0, s21, {base + WB + ks*4096}')
            e('s_nop 0')
            k.vmem('global_load_lds_dwordx4 v1, s[4:5]', f'c{c}')
            add64(k, 4, 1024)
        for n in range(nfull):
            e(f's_add_u32 m0, s21, {base + n*4096}')
            e('s_nop 0')
            k.vmem('global_load_lds_dwordx4 v1, s[6:7]', f'c{c}')
            add64(k, 6, 4096)
        e(f's_add_u32 m0, s26, {base + nfull*4096}')
        e('s_nop 0')
        k.vmem('global_load_lds_dwordx4 v1, s[10:11]', f'c{c}')
        add64(k, 6, WB - nfull * 4096)
        add64(k, 10, WB)
    e(f's_min_u32 s25, s24, {rem-1}'); e('s_lshl_b32 s26, s25, 10')
    e('s_sub_u32 s25, s20, s21'); e('s_add_u32 s25, s25, s26'); e(f's_add_u32 s25, s25, {nfull*4096}')
    e('s_add_u32 s10, s12, s25'); e('s_addc_u32 s11, s13, 0')
    issued = 0
    for c in range(2):
        issue_stage(c); issued += 1
    for c in range(NSTG):
        k.wait(vm=f'c{c}')
        if c == 8:
            k.wait(vm='cs')
            for g in range(1, 16): e(f'v_add_f32 v16, v16, v{16+g}')
            e('ds_write_b32 v15, v16'); e('s_waitcnt lgkmcnt(0)')
        e('s_barrier')
        n = 0
        while issued < NSTG and issued <= c + NS - 2 and n < 2:
            issue_stage(issued); issued += 1; n += 1
        if c == 3:
            e('v_subrev_u32 v10, 256, v0')
            e('v_lshrrev_b32 v11, 5, v10'); e('v_min_u32 v11, 6, v11')
            e('v_and_b32 v12, 31, v10')
            e('v_lshl_add_u32 v13, v11, 5, v12')
            e('s_mul_i32 s22, s18, 224')
            e('v_add_u32 v13, s22, v13')
            e('v_lshlrev_b32 v13, 2, v13')
            e('v_bfe_u32 v14, v12, 2, 1')
            e('v_lshl_add_u32 v14, v11, 1, v14')
            e('v_lshlrev_b32 v14, 4, v14')
            e('v_and_b32 v15, 3, v12'); e('v_add_u32 v14, v14, v15')
            e('v_lshrrev_b32 v15, 3, v12'); e('v_lshl_add_u32 v14, v15, 2, v14')
            e('v_lshlrev_b32 v14, 2, v14')
            e(f'v_add_u32 v15, {TBL}, v14')
            for g in range(16):
                k.vmem(f'global_load_dword v{16+g}, v13, s[8:9]', 'cs')
                if g < 15: add64(k, 8, 14336)
    e('s_mul_i32 s20, s41, 229376'); e(f's_add_u32 s20, s20, {WP4}'); e('s_lshl_b32 s21, s24, 11'); e('s_add_u32 s20, s20, s21')
    e('s_add_u32 s6, s12, s20'); e('s_addc_u32 s7, s13, 0')
    e('s_lshl_b32 s19, s42, 1'); e('s_lshr_b32 s22, s24, 1'); e('s_add_u32 s19, s19, s22'); e('s_mul_i32 s19, s19, 114688')
    e('s_and_b32 s22, s24, 1'); e('s_lshl_b32 s22, s22, 11'); e('s_add_u32 s19, s19, s22'); e(f's_add_u32 s19, s19, {HHBUF}')
    e('s_add_u32 s4, s12, s19'); e('s_addc_u32 s5, s13, 0')
    def issue_w(c):
        e(f's_add_u32 m0, s21, {(c % NWB)*8192}'); e('s_nop 0')
        k.vmem('global_load_lds_dwordx4 v1, s[6:7]', f'w{c}')
        k.vmem('global_load_lds_dwordx4 v1, s[6:7] offset:1024', f'w{c}')
        add64(k, 6, 8192)
    def issue_h(c):
        e(f's_add_u32 m0, s21, {HB0 + (c % NHB)*8192}'); e('s_nop 0')
        k.vmem('global_load_lds_dwordx4 v1, s[4:5] sc1', f'h{c}')
        k.vmem('global_load_lds_dwordx4 v1, s[4:5] offset:1024 sc1', f'h{c}')
        add64(k, 4, 4096)
    e('s_barrier')
    for c in range(NWB): issue_w(c)
    e('s_waitcnt vmcnt(0)'); k.vm = []
    e('s_lshr_b32 s43, s42, 1'); e('s_lshl_b32 s43, s43, 8'); e(f's_add_u32 s43, s43, {CNT}')
    wait_flag(k, 1, 's43', 16, 32, own_word=0 if os.environ.get('OWN', '0') == '1' else None)
    for c in range(NHB): issue_h(c)
    wi, hi = NWB, NHB
    for c in range(NSB):
        k.wait(vm=[f'h{c}', f'w{c}'])
        e('s_barrier')
        if c >= 2:
            if hi < NSB: issue_h(hi); hi += 1
            if wi < NSB: issue_w(wi); wi += 1
    k.label(END)
    e('s_endpgm')
    return k
```

```python
import sys, os
sys.path.insert(0, 'dev')
from asmlib import *

CBUF = 0x000000
HBUF = 0x200000
WP3 = 0x400000
CSUMP = 0x780000
WP4 = 0x800000
HHBUF = 0xA00000
CNT = 0x7F0000
KA = dict(x=0, ws_re=8, ws_im=16, wd_re=24, wd_im=32, bx=40, wg=48, wu=56, wdn=64, out=72, dbg=80, ws=88)
ONES = 0x3F803F80

def add64(k, lo, val):
    k.e(f's_add_u32 s{lo}, s{lo}, {val}')
    k.e(f's_addc_u32 s{lo+1}, s{lo+1}, 0')

def gen_k1():
    k = Kern('k1_kernel', 256, lds=132096, nvgpr=160)
    e = k.e
    END = '.L_k1_end'
    e('s_cmp_ge_u32 s2, 256'); e(f's_cbranch_scc1 {END}')
    k.stamp()
    e(f's_load_dwordx2 s[20:21], s[0:1], {KA["x"]}')
    e(f's_load_dwordx4 s[8:11], s[0:1], {KA["wd_re"]}')
    e(f's_load_dwordx2 s[12:13], s[0:1], {KA["ws"]}')
    e('v_and_b32 v1, 63, v0')
    e('v_lshrrev_b32 v2, 6, v0')
    e('s_and_b32 s15, s2, 31')
    e('v_readfirstlane_b32 s14, v2')
    e('s_lshr_b32 s16, s2, 5')
    e('s_and_b32 s17, s15, 3')
    e('s_lshr_b32 s18, s15, 2')
    e('v_lshrrev_b32 v3, 4, v1')
    e('v_and_b32 v4, 15, v1')
    e('s_and_b32 s24, s14, 1'); e('s_lshr_b32 s25, s14, 1')
    e('s_lshl_b32 s26, s17, 19')
    e('s_lshl_b32 s27, s18, 3'); e('s_lshl_b32 s28, s24, 1'); e('s_add_u32 s27, s27, s28')
    e('s_lshl_b32 s28, s25, 2'); e('s_add_u32 s27, s27, s28'); e('s_lshl_b32 s27, s27, 10')
    e('s_add_u32 s26, s26, s27')
    e('s_lshl_b32 s27, s16, 5'); e('s_add_u32 s27, s27, 1'); e('s_lshl_b32 s28, s24, 4'); e('s_add_u32 s27, s27, s28')
    e('s_lshl_b32 s27, s27, 10')
    for a in range(4):
        e(f'v_add_u32 v5, {4*a}, v3')
        e('v_xor_b32 v5, v5, v4')
        e('v_lshlrev_b32 v5, 4, v5')
        e('v_lshl_add_u32 v6, v3, 16, v5')
        e(f's_add_u32 s28, s26, {(4*(a>>1))*65536 + (a&1)*1024}')
        e(f'v_add_u32 v{8+a}, s28, v6')
        e('v_lshl_add_u32 v6, v3, 10, v5')
        e(f's_add_u32 s28, s27, {4*a*1024}')
        e(f'v_add_u32 v{12+a}, s28, v6')
    e('s_lshl_b32 s29, s14, 12')
    e('s_waitcnt lgkmcnt(0)')
    e('s_cmp_eq_u32 s25, 0')
    e('s_cselect_b32 s22, s8, s10'); e('s_cselect_b32 s23, s9, s11')
    for kq in range(4):
        for a in range(4):
            e(f's_add_u32 m0, s29, {kq*16384 + a*1024}'); e('s_nop 0')
            k.vmem(f'global_load_lds_dwordx4 v{8+a}, s[20:21]', f'q{kq}')
            e(f's_add_u32 m0, s29, {65536 + kq*16384 + a*1024}'); e('s_nop 0')
            k.vmem(f'global_load_lds_dwordx4 v{12+a}, s[22:23]', f'q{kq}')
        if kq < 3:
            add64(k, 20, 256); add64(k, 22, 256)
    e('v_and_b32 v5, 31, v1')
    e('v_lshrrev_b32 v6, 5, v1')
    e('v_xor_b32 v7, v6, v4')
    e('v_lshlrev_b32 v7, 4, v7')
    e('v_lshl_add_u32 v7, v5, 8, v7')
    e('s_lshl_b32 s28, s24, 13')
    e('v_add_u32 v16, s28, v7')
    e('s_lshl_b32 s28, s25, 13'); e('s_add_u32 s28, s28, 65536')
    e('v_add_u32 v24, s28, v7')
    for ks in range(1, 8):
        e(f'v_xor_b32 v{16+ks}, {ks<<5}, v16')
        e(f'v_xor_b32 v{24+ks}, {ks<<5}, v24')
    ACC = 32
    ST = 48
    FR = 64
    for i in range(16): e(f'v_mov_b32 v{ACC+i}, 0')
    for i in range(4): e(f'v_mov_b32 v{ST+i}, 0')
    e(f's_mov_b32 s30, {ONES}')
    LSQ = '.L_k1_sq'; LJ = '.L_k1_join'
    k.stamp()
    e('s_cmp_eq_u32 s25, 1'); e(f's_cbranch_scc1 {LSQ}')
    vm_save = list(k.vm)
    for variant in range(2):
        k.vm = list(vm_save); k.lg = []
        if variant == 1: k.label(LSQ)
        for kq in range(4):
            k.wait(vm=f'q{kq}')
            e('s_barrier')
            if variant == 1: k.nst = 2 + kq
            k.stamp()
            for ks in range(8):
                k.ds(f'ds_read_b128 v[{FR+8*ks}:{FR+8*ks+3}], v{16+ks} offset:{kq*16384}', f'f{ks}')
                k.ds(f'ds_read_b128 v[{FR+8*ks+4}:{FR+8*ks+7}], v{24+ks} offset:{kq*16384}', f'f{ks}')
            for ks in range(8):
                k.wait(lg=f'f{ks}')
                a = FR + 8 * ks
                e(f'v_mfma_f32_32x32x16_bf16 v[{ACC}:{ACC+15}], v[{a}:{a+3}], v[{a+4}:{a+7}], v[{ACC}:{ACC+15}]')
                for i in range(4):
                    src = f'v{a+i}' if variant else 's30'
                    e(f'v_dot2_f32_bf16 v{ST+i}, v{a+i}, {src}, v{ST+i}')
        if variant == 0: e(f's_branch {LJ}')
    k.label(LJ)
    k.stamp()
    k.nop(3)
    e(f'v_add_f32 v{ST}, v{ST}, v{ST+1}'); e(f'v_add_f32 v{ST+2}, v{ST+2}, v{ST+3}')
    e(f'v_add_f32 v{ST}, v{ST}, v{ST+2}')
    e(f'v_mov_b32 v{ST+1}, v{ST}')
    k.nop(2)
    e(f'v_permlane32_swap_b32 v{ST+1}, v{ST}')
    k.nop(1)
    e(f'v_add_f32 v{ST}, v{ST}, v{ST+1}')
    e('s_lshl_b32 s28, s25, 8'); e('s_lshl_b32 s31, s24, 7'); e('s_add_u32 s28, s28, s31'); e('s_add_u32 s28, s28, 131072')
    e('v_lshlrev_b32 v52, 2, v5')
    e('v_add_u32 v53, s28, v52')
    e(f'ds_write_b32 v53, v{ST}')
    e('s_waitcnt lgkmcnt(0)'); e('s_barrier')
    e('s_add_u32 s28, s31, 131072')
    e('v_add_u32 v53, s28, v52')
    e('ds_read_b32 v54, v53'); e('ds_read_b32 v55, v53 offset:256')
    e('s_waitcnt lgkmcnt(0)')
    e('v_mul_f32 v54, 0x3b000000, v54')
    e('v_mul_f32 v55, 0x3b000000, v55')
    e('v_fma_f32 v55, -v54, v54, v55')
    e('v_max_f32 v55, 0, v55')
    e('v_add_f32 v55, 0x3727c5ac, v55')
    e('v_rsq_f32 v55, v55')
    e('s_lshl_b32 s28, s14, 7'); e('s_add_u32 s28, s28, 131584')
    e('v_add_u32 v53, s28, v52')
    e('ds_write_b32 v53, v55')
    e('v_lshlrev_b32 v56, 4, v6')
    e('v_add_u32 v53, s28, v56')
    e('s_waitcnt lgkmcnt(0)')
    for rq in range(4):
        e(f'ds_read_b128 v[{FR+4*rq}:{FR+4*rq+3}], v53 offset:{rq*32}')
    e('v_lshrrev_b32 v57, 2, v5'); e('v_lshlrev_b32 v57, 15, v57')
    e('v_and_b32 v58, 3, v5'); e('v_lshl_add_u32 v57, v58, 11, v57')
    e('v_add_u32 v57, v57, v56')
    e('s_lshl_b32 s28, s16, 18')
    e('s_lshr_b32 s31, s18, 1'); e('s_lshl_b32 s31, s31, 13'); e('s_add_u32 s28, s28, s31')
    e('s_lshl_b32 s31, s25, 10'); e('s_add_u32 s28, s28, s31')
    e('s_lshl_b32 s31, s17, 8'); e('s_add_u32 s28, s28, s31')
    e('s_and_b32 s31, s18, 1'); e('s_lshl_b32 s31, s31, 7'); e('s_add_u32 s28, s28, s31')
    e('s_lshl_b32 s31, s24, 6'); e('s_add_u32 s28, s28, s31')
    if CBUF: e(f's_add_u32 s28, s28, {CBUF}')
    e('v_add_u32 v57, s28, v57')
    e('s_waitcnt lgkmcnt(0)')
    for r in range(16):
        e(f'v_mul_f32 v{ACC+r}, v{ACC+r}, v{FR+r}')
    for p in range(8):
        e(f'v_cvt_pk_bf16_f32 v{FR+16+p}, v{ACC+2*p}, v{ACC+2*p+1}')
    e(f'global_store_dwordx4 v57, v[{FR+16}:{FR+19}], s[12:13]')
    e(f'global_store_dwordx4 v57, v[{FR+20}:{FR+23}], s[12:13] offset:32')
    k.stamp_flush(0)
    k.label(END)
    e('s_endpgm')
    return k

def f2u(x):
    import struct
    return '0x%08x' % struct.unpack('<I', struct.pack('<f', x))[0]

K2WT = ''
def gen_k2(prepack=False, pre_dn=True):
    NPG, NPD = (0, 56) if pre_dn else (0, 0)
    k = Kern('k2_kernel', 256 + NPG + NPD, lds=32768 if pre_dn else 16384, nvgpr=180)
    e = k.e
    END = '.L_k2_end'; LPG = '.L_k2_pg'; LPD = '.L_k2_pd'
    e(f's_cmp_ge_u32 s2, {256+NPG+NPD}'); e(f's_cbranch_scc1 {END}')
    k.stamp()
    e(f's_load_dwordx2 s[12:13], s[0:1], {KA["ws"]}')
    e('v_and_b32 v1, 63, v0')
    e('v_lshrrev_b32 v2, 6, v0')
    e('s_nop 0')
    e('v_readfirstlane_b32 s14, v2')
    if pre_dn:
        e(f's_cmp_ge_u32 s2, 256'); e(f's_cbranch_scc1 {LPD}')
    e('s_and_b32 s15, s2, 63')
    e('s_lshr_b32 s16, s2, 6')
    e('v_and_b32 v3, 15, v1')
    e('v_lshrrev_b32 v4, 4, v1')
    e('v_lshlrev_b32 v5, 4, v1')
    e('s_lshl_b32 s17, s15, 15'); e('s_lshl_b32 s18, s14, 13'); e('s_add_u32 s17, s17, s18')
    if CBUF: e(f's_add_u32 s17, s17, {CBUF}')
    e('v_add_u32 v6, s17, v5')
    e('v_add_u32 v7, 4096, v6')
    e('s_and_b32 s24, s14, 1'); e('s_lshr_b32 s25, s14, 1')
    e('s_lshl_b32 s19, s24, 5'); e('s_add_u32 s19, s19, s25')
    e('v_lshl_add_u32 v8, v3, 1, s19')
    e('s_lshl_b32 s19, s16, 3')
    e('v_lshl_add_u32 v9, v4, 1, s19')
    e('s_lshl_b32 s22, s25, 5')
    e('v_add_u32 v10, s22, v9')
    e('v_lshlrev_b32 v10, 15, v10')
    e('v_lshl_add_u32 v10, v3, 4, v10')
    e('s_lshl_b32 s22, s15, 9'); e('s_lshl_b32 s23, s24, 8'); e('s_add_u32 s22, s22, s23'); e(f's_add_u32 s22, s22, {HBUF}')
    e('v_add_u32 v10, s22, v10')
    e('v_add_u32 v11, 0x8000, v10')
    A1 = 32
    XL = 64
    e('s_waitcnt lgkmcnt(0)')
    for f in range(8):
        k.vmem(f'global_load_dwordx4 v[{A1+4*f}:{A1+4*f+3}], v{6 + (f>>2)}, s[12:13] offset:{(f&3)*1024}', f'a{f}')
    for u in range(2):
        k.vmem(f'global_load_dwordx4 v[{XL+4*u}:{XL+4*u+3}], v{10+u}, s[12:13]', 'x')
    k.stamp()
    B1 = 80
    TW = 84
    B2 = 100
    T = 16
    e('v_lshrrev_b32 v13, 1, v3'); e('v_add_u32 v13, s19, v13')
    e('v_and_b32 v14, 1, v3')
    e('v_cvt_f32_u32 v15, v13')
    e(f'v_cvt_f32_u32 v{T}, v14')
    e(f'v_cvt_f32_u32 v{T+1}, v4')
    e(f'v_mul_f32 v{T+2}, {f2u(1/32)}, v15')
    e(f'v_mul_f32 v{T+3}, 0x41000000, v{T+1}')
    e(f'v_mul_f32 v{T+3}, v{T+3}, v{T+2}')
    e(f'v_mul_f32 v{T+4}, {f2u(0.25)}, v{T}')
    e(f'v_add_f32 v{T+3}, v{T+3}, v{T+4}')
    for jj in range(8):
        e(f'v_cos_f32 v{T+8+jj}, v{T+3}')
        if jj < 7: e(f'v_add_f32 v{T+3}, v{T+3}, v{T+2}')
    e('s_nop 0')
    for p in range(4):
        e(f'v_cvt_pk_bf16_f32 v{B1+p}, v{T+8+2*p}, v{T+9+2*p}')
    e(f'v_mul_f32 v{T+2}, {f2u(1/2048)}, v15')
    e('s_lshl_b32 s22, s14, 4')
    e(f'v_lshl_add_u32 v{T+3}, v4, 2, s22')
    e(f'v_cvt_f32_u32 v{T+3}, v{T+3}')
    e(f'v_mul_f32 v{T+3}, v{T+3}, v{T+2}')
    e(f'v_sub_f32 v{T+5}, v{T+3}, v{T+4}')
    e(f'v_add_f32 v{T+6}, v{T+3}, v{T+4}')
    e(f'v_subrev_f32 v{T+6}, {f2u(0.25)}, v{T+6}')
    e(f'v_fma_f32 v{T+7}, v{T}, -2.0, 1.0')
    for r in range(4):
        e(f'v_cos_f32 v{TW+r}, v{T+5}')
        e(f'v_cos_f32 v{TW+4+r}, v{T+6}')
        if r < 3:
            e(f'v_add_f32 v{T+5}, v{T+5}, v{T+2}'); e(f'v_add_f32 v{T+6}, v{T+6}, v{T+2}')
    e('s_nop 0')
    for r in range(8):
        e(f'v_mul_f32 v{TW+8+r}, v{TW+r}, v{T+7}')
    e(f'v_cvt_f32_u32 v{T+2}, v8')
    e(f'v_mul_f32 v{T+2}, {f2u(1/64)}, v{T+2}')
    e(f'v_mul_f32 v{T+3}, 4.0, v{T+1}')
    e(f'v_mul_f32 v{T+3}, v{T+3}, v{T+2}')
    e(f'v_mul_f32 v{T+4}, {f2u(13.0)}, v{T+2}')
    for ks in range(4):
        for r in range(4):
            e(f'v_cos_f32 v{T+8}, v{T+3}')
            e(f'v_sin_f32 v{T+9}, v{T+3}')
            e(f'v_add_f32 v{T+3}, v{T+3}, v{T+2 if r < 3 else T+4}')
            e(f'v_cvt_pk_bf16_f32 v{B2+4*ks+r}, v{T+8}, v{T+9}')
    k.stamp()
    D1 = 116
    for f in range(8):
        k.wait(vm=f'a{f}')
        e(f'v_mfma_f32_16x16x32_bf16 v[{D1+4*f}:{D1+4*f+3}], v[{A1+4*f}:{A1+4*f+3}], v[{B1}:{B1+3}], 0')
    DPP = 'quad_perm:[1,0,3,2] row_mask:0xf bank_mask:0xf'
    e('s_lshl_b32 s22, s14, 10')
    e('v_add_u32 v15, s22, v5')
    k.stamp()
    k.nop(6)
    for ei in range(4):
        a = D1 + 8 * ei; b = a + 4
        for r in range(4):
            X = T + 2 * r; Y = X + 1
            e(f'v_subrev_f32_dpp v{X}, v{b+r}, v{a+r} {DPP}')
            e(f'v_add_f32_dpp v{Y}, v{a+r}, v{b+r} {DPP}')
        for r in range(4):
            X = T + 2 * r; Y = X + 1
            e(f'v_mul_f32 v{T+8+2*r}, v{TW+r}, v{X}')
            e(f'v_mul_f32 v{T+9+2*r}, v{TW+8+r}, v{Y}')
        for r in range(4):
            X = T + 2 * r; Y = X + 1
            e(f'v_fmac_f32 v{T+8+2*r}, v{TW+4+r}, v{Y}')
            e(f'v_fma_f32 v{T+9+2*r}, -v{TW+12+r}, v{X}, v{T+9+2*r}')
        for r in range(4):
            e(f'v_cvt_pk_bf16_f32 v{A1+4*ei+r}, v{T+8+2*r}, v{T+9+2*r}')
        e(f'ds_write_b128 v15, v[{A1+4*ei}:{A1+4*ei+3}] offset:{ei*4096}')
    e('s_waitcnt lgkmcnt(0)'); e('s_barrier')
    k.stamp()
    A2 = 116
    D2 = 48
    for half in range(2):
        for ei in range(2 * half, 2 * half + 2):
            for ks in range(4):
                rr = A2 + 16 * (ei & 1) + 4 * ks
                k.ds(f'ds_read_b128 v[{rr}:{rr+3}], v5 offset:{(ei*4+ks)*1024}', f'g{ei}{ks}')
        for ei in range(2 * half, 2 * half + 2):
            for ks in range(4):
                rr = A2 + 16 * (ei & 1) + 4 * ks
                k.wait(lg=f'g{ei}{ks}')
                cin = '0' if ks == 0 else f'v[{D2+4*ei}:{D2+4*ei+3}]'
                e(f'v_mfma_f32_16x16x32_bf16 v[{D2+4*ei}:{D2+4*ei+3}], v[{rr}:{rr+3}], v[{B2+4*ks}:{B2+4*ks+3}], {cin}')
        A2 += 32
    k.stamp()
    k.wait(vm='x')
    k.stamp()
    LN63 = '.L_k2_n63'
    e('s_cmp_lg_u32 s15, 63'); e(f's_cbranch_scc1 {LN63}')
    k.nop(8)
    for u in range(2):
        e(f'v_mov_b32 v{D2+12+2*u}, 0')
    k.label(LN63)
    k.nop(8)
    e('s_mov_b32 s22, 0xffff0000')
    for u in range(2):
        xl = XL + 4 * u
        srcs = [('lo', xl), ('hi', xl), ('lo', xl + 1), ('hi', xl + 1), ('lo', xl + 2), ('hi', xl + 2), ('lo', xl + 3), ('hi', xl + 3)]
        for i, (part, rg) in enumerate(srcs):
            if part == 'hi': e(f'v_and_b32 v{T+i}, s22, v{rg}')
            else: e(f'v_lshlrev_b32 v{T+i}, 16, v{rg}')
        for i in range(8):
            y = D2 + 4 * i + 2 * u if i < 4 else D2 + 4 * (7 - i) + 2 * u + 1
            e(f'v_add_f32 v{T+i}, v{T+i}, v{y}')
        o = T + 8 + 4 * u
        for p in range(4):
            e(f'v_cvt_pk_bf16_f32 v{o+p}, v{T+2*p}, v{T+2*p+1}')
        e(f'global_store_dwordx4 v{10+u}, v[{o}:{o+3}], s[12:13]' + K2WT)
    k.stamp_flush(1)
    e('s_endpgm')
    k.nst = 1
    if not prepack:
        if pre_dn:
            import gen1b
            k.label(LPD); k.vm = []; k.lg = []
            e('s_sub_u32 s15, s2, 256')
            gen1b.emit_prepack_dn(k, 's15')
            k.stamp_flush(1)
        k.label(END)
        e('s_endpgm')
        return k

    k.label(LPG)
    k.vm = []; k.lg = []
    e(f's_load_dwordx4 s[4:7], s[0:1], {KA["wg"]}')
    e('s_sub_u32 s15, s2, 256')
    e('s_cmp_ge_u32 s15, 56')
    e('s_cselect_b32 s16, 1, 0')
    e('s_mul_i32 s17, s16, 56'); e('s_sub_u32 s15, s15, s17')
    e('s_lshr_b32 s17, s15, 3')
    e('s_and_b32 s18, s15, 7')
    e('v_and_b32 v3, 31, v1')
    e('v_lshrrev_b32 v4, 5, v1')
    e('s_lshl_b32 s19, s18, 3'); e('s_lshl_b32 s20, s14, 1'); e('s_add_u32 s19, s19, s20')
    e('v_add_u32 v5, s19, v4')
    e('s_lshl_b32 s20, s17, 8')
    e('v_lshl_add_u32 v6, v3, 3, s20')
    e('v_lshlrev_b32 v7, 1, v6')
    e('v_lshlrev_b32 v8, 2, v5')
    e('s_movk_i32 s21, 3584')
    for i in range(4):
        e(f'v_add_u32 v9, {1+i}, v8'); e('v_and_b32 v9, 255, v9')
        e(f'v_mad_u32_u24 v{16+i}, v9, s21, v7')
        e(f'v_sub_u32 v9, {508+i}, v8')
        e(f'v_mad_u32_u24 v{20+i}, v9, s21, v7')
    e('s_waitcnt lgkmcnt(0)')
    e('s_cmp_eq_u32 s16, 0')
    e('s_cselect_b32 s4, s4, s6'); e('s_cselect_b32 s5, s5, s7')
    IN = 32
    for i in range(8):
        e(f'global_load_dwordx4 v[{IN+4*i}:{IN+4*i+3}], v{16+i}, s[4:5]')
    e('s_movk_i32 s21, 2341')
    e('v_mul_u32_u24 v9, s21, v6'); e('v_lshrrev_b32 v9, 18, v9')
    e('s_movk_i32 s21, 112')
    e('v_mul_u32_u24 v10, s21, v9'); e('v_sub_u32 v10, v6, v10')
    e('v_lshrrev_b32 v11, 4, v10')
    e('v_lshrrev_b32 v12, 1, v5')
    e('v_lshl_add_u32 v12, v9, 5, v12')
    e('v_mul_u32_u24 v12, 7, v12'); e('v_add_u32 v12, v12, v11')
    e('v_lshlrev_b32 v12, 10, v12')
    e('v_lshl_add_u32 v12, v4, 9, v12')
    e('v_and_b32 v10, 15, v10')
    e('v_lshl_add_u32 v12, v10, 4, v12')
    e('s_lshl_b32 s21, s16, 8'); e(f's_add_u32 s21, s21, {WP3}')
    e('v_add_u32 v12, s21, v12')
    e('s_mov_b32 s22, 0x05040100'); e('s_mov_b32 s23, 0x07060302'); e(f's_mov_b32 s24, {ONES}')
    OUT = 64; SUM = 96
    k.stamp()
    e('s_waitcnt vmcnt(0)')
    k.stamp()
    for jf in range(8):
        for p in range(4):
            e(f'v_perm_b32 v{OUT+4*jf+p}, v{IN+4*(2*p+1)+(jf>>1)}, v{IN+4*(2*p)+(jf>>1)}, s{22+(jf&1)}')
        e(f'global_store_dwordx4 v12, v[{OUT+4*jf}:{OUT+4*jf+3}], s[12:13] offset:{jf*16}')
    for jf in range(8):
        e(f'v_mov_b32 v{SUM+jf}, 0')
    for p in range(4):
        for jf in range(8):
            e(f'v_dot2_f32_bf16 v{SUM+jf}, v{OUT+4*jf+p}, s24, v{SUM+jf}')
    e('s_lshl_b32 s21, s14, 11')
    e('v_lshlrev_b32 v13, 10, v4'); e('v_lshl_add_u32 v13, v3, 5, v13'); e('v_add_u32 v13, s21, v13')
    k.nop(2)
    e(f'ds_write_b128 v13, v[{SUM}:{SUM+3}]'); e(f'ds_write_b128 v13, v[{SUM+4}:{SUM+7}] offset:16')
    e('s_waitcnt lgkmcnt(0)'); e('s_barrier')
    e('v_lshlrev_b32 v13, 2, v0')
    for g in range(8):
        e(f'ds_read_b32 v{IN+g}, v13 offset:{g*1024}')
    e('s_lshl_b32 s21, s18, 1'); e('s_add_u32 s21, s21, s16'); e('s_mul_i32 s21, s21, 1792')
    e('s_add_u32 s21, s21, s20'); e('s_lshl_b32 s21, s21, 2'); e(f's_add_u32 s21, s21, {CSUMP}')
    e('v_add_u32 v13, s21, v13')
    e('s_waitcnt lgkmcnt(0)')
    for g in range(1, 8):
        e(f'v_add_f32 v{IN}, v{IN}, v{IN+g}')
    e(f'global_store_dword v13, v{IN}, s[12:13]')
    k.stamp_flush(1)
    e('s_endpgm')
    k.nst = 1

    k.label(LPD)
    e(f's_load_dwordx2 s[4:5], s[0:1], {KA["wdn"]}')
    e(f's_sub_u32 s15, s2, {256+NPG}')
    e('s_lshl_b32 s15, s15, 2'); e('s_add_u32 s15, s15, s14')
    e('s_lshr_b32 s16, s15, 1')
    e('s_and_b32 s17, s15, 1')
    e('s_lshl_b32 s18, s16, 4'); e('s_lshl_b32 s19, s17, 2'); e('s_add_u32 s18, s18, s19')
    e('s_lshl_b32 s18, s18, 10')
    e('v_lshlrev_b32 v3, 4, v1')
    e('v_add_u32 v3, s18, v3')
    e('v_add_u32 v4, 8192, v3')
    e('s_waitcnt lgkmcnt(0)')
    for i in range(8):
        e(f'global_load_dwordx4 v[{IN+4*i}:{IN+4*i+3}], v{3+(i>>2)}, s[4:5] offset:{(i&3)*1024}')
    e('v_lshrrev_b32 v5, 3, v1')
    e('s_movk_i32 s21, 112')
    e('v_mul_u32_u24 v5, s21, v5'); e('v_add_u32 v5, s16, v5')
    e('v_bfe_u32 v6, v1, 2, 1')
    e('v_lshl_add_u32 v5, v5, 1, v6')
    e('v_lshlrev_b32 v5, 10, v5')
    e('v_bfe_u32 v6, v1, 1, 1')
    e('v_lshl_add_u32 v5, v6, 6, v5')
    e('v_and_b32 v6, 1, v1')
    e('v_lshl_add_u32 v5, v6, 8, v5')
    e('s_lshl_b32 s21, s17, 9'); e(f's_add_u32 s21, s21, {WP4}')
    e('v_add_u32 v5, s21, v5')
    e('s_mov_b32 s22, 0x05040100'); e('s_mov_b32 s23, 0x07060302')
    k.stamp()
    e('s_waitcnt vmcnt(0)')
    k.stamp()
    for jc in range(8):
        for p in range(4):
            e(f'v_perm_b32 v{OUT+4*jc+p}, v{IN+4*(2*p+1)+(jc>>1)}, v{IN+4*(2*p)+(jc>>1)}, s{22+(jc&1)}')
        e(f'global_store_dwordx4 v5, v[{OUT+4*jc}:{OUT+4*jc+3}], s[12:13] offset:{(jc&3)*16 + (jc>>2)*128}')
    k.stamp_flush(1)
    k.label(END)
    e('s_endpgm')
    return k

HEADER = open('sequential_preLN__spectral_fnet__glu_gated_glu__prompt.s.ref').read().split('; Override')[0]

if __name__ == '__main__':
    assert all(((f * 2341) >> 18) == f // 112 for f in range(0, 1792, 8))
    import gen1b
    ks = [gen1b.gen_k1(pre_dn=False), gen_k2()]
    try:
        from gen34 import gen_k4
        from gen3b import gen_k3_full
        if os.environ.get('FUSE', '1') == '1':
            import gen5
            ks += [gen5.gen_k34()]
        else:
            ks += [gen_k3_full(), gen_k4()]
    except ImportError:
        pass
    for k in ks:
        for p in lint(k): print('LINT', p)
    out = sys.argv[1] if len(sys.argv) > 1 else 'out.s'
    open(out, 'w').write(assemble_file(ks, HEADER))
    print('wrote', out)
```
